```python
import torch

def _softmax(x, axis=-1):
    return torch.softmax(x, dim=axis)
def _gelu(x):
    return torch.nn.functional.gelu(x, approximate="tanh")
def _silu(x):
    return torch.nn.functional.silu(x)
def _sigmoid(x):
    return torch.sigmoid(x)
def _layernorm(x, axis=-1, eps=1e-5):
    m = x.mean(dim=axis, keepdim=True)
    v = x.var(dim=axis, keepdim=True, unbiased=False)
    return (x - m) / torch.sqrt(v + eps)
def _scatter_add(tgt, idx, src, axis=0):
    return tgt.clone().index_add_(axis, idx, src)
def _segment_sum(src, seg, n):
    out = torch.zeros((n,) + src.shape[1:], dtype=src.dtype)
    return out.index_add_(0, seg, src)
def _pad(x, pw):
    flat = tuple(v for pair in reversed(pw) for v in pair)
    return torch.nn.functional.pad(x, flat)

kernel_name = 'standalone__mha_softmax__near_ridge'

def setup_inputs():

    _w = (lambda a: (lambda t: t.to(torch.bfloat16) if t.is_floating_point() else t)(torch.as_tensor(a)))
    B, H, Sq, Sk, D = 8, 32, 304, 2048, 128
    return {
        "q": _w((lambda *s: torch.randn(*s, dtype=torch.bfloat16) * 0.8)(B, H, Sq, D)),
        "k": _w((lambda *s: torch.randn(*s, dtype=torch.bfloat16) * 0.8)(B, H, Sk, D)),
        "v": _w((lambda *s: torch.randn(*s, dtype=torch.bfloat16) * 0.05)(B, H, Sk, D)),
    }

def reference(q, k, v):
    scale = q.shape[-1] ** -0.5
    scores = torch.einsum("bhqd,bhkd->bhqk", q, k) * scale
    p = _softmax(scores, axis=-1)
    return torch.einsum("bhqk,bhkd->bhqd", p, v)
```

```python
import re

def regs(spec):
    spec = spec.strip().lstrip('-')
    m = re.fullmatch(r'abs\((.*)\)', spec)
    if m: spec = m.group(1)
    m = re.fullmatch(r'([vas])\[(\d+):(\d+)\]', spec)
    if m: return {f'{m.group(1)}{i}' for i in range(int(m.group(2)), int(m.group(3)) + 1)}
    if re.fullmatch(r'[vas]\d+', spec): return {spec}
    if spec in ('m0', 'vcc', 'exec', 'scc'): return {spec}
    return set()

def R(kind, base, n=1):
    return f'{kind}{base}' if n == 1 else f'{kind}[{base}:{base+n-1}]'

TRANS = ('v_exp_f32', 'v_rcp_f32', 'v_log_f32', 'v_rsq_f32', 'v_sqrt_f32')

class I:
    __slots__ = ('text', 'kind', 'rd', 'wr', 'srcc', 'ab', 'ws', 'tag')
    def __init__(self, text, tag=None):
        self.text = text; self.tag = tag
        self.rd = set(); self.wr = set(); self.srcc = set(); self.ab = set(); self.ws = 1
        t = text.split(';')[0].strip()
        if t.endswith(':') or t.startswith('.') or not t:
            self.kind = 'label'; self.ws = 0; return
        op, _, rest = t.partition(' ')
        ops = [o.strip() for o in re.split(r',\s*(?![^\[]*\])', rest)] if rest else []
        if ops:
            last = ops[-1].split(' ')
            ops[-1] = last[0]; mods = last[1:]
        else: mods = []
        if op.startswith('v_mfma'):
            self.kind = 'mfma'; self.wr = regs(ops[0]); self.ab = regs(ops[1]) | regs(ops[2]); self.srcc = regs(ops[3])
            self.rd = self.ab | self.srcc
        elif op.startswith('v_smfmac'):
            self.kind = 'mfma'; self.wr = regs(ops[0]); self.ab = regs(ops[1]) | regs(ops[2]) | regs(ops[3]); self.srcc = regs(ops[0])
            self.rd = self.ab | self.srcc
        elif op.startswith('v_permlane') and 'swap' in op:
            self.kind = 'perm'; self.wr = regs(ops[0]) | regs(ops[1]); self.rd = set(self.wr)
        elif op.startswith('v_readfirstlane') or op.startswith('v_readlane'):
            self.kind = 'rdlane'; self.wr = regs(ops[0]); self.rd = regs(ops[1])
        elif op.startswith('v_cmp'):
            self.kind = 'valu'; self.wr = regs(ops[0]); self.rd = set().union(*[regs(o) for o in ops[1:]])
        elif op.startswith('v_'):
            self.kind = 'trans' if op.replace('_e32', '').replace('_e64', '') in TRANS else 'valu'
            self.wr = regs(ops[0]); self.rd = set().union(*[regs(o) for o in ops[1:]]) if len(ops) > 1 else set()
            if op.startswith('v_fmac') or op.startswith('v_cndmask') and len(ops) == 3: self.rd |= self.wr
        elif op.startswith('ds_read'):
            self.kind = 'ds'; self.wr = regs(ops[0]); self.rd = regs(ops[1])
        elif op.startswith('ds_write'):
            self.kind = 'ds'; self.rd = set().union(*[regs(o) for o in ops])
        elif op.startswith('global_load'):
            self.kind = 'vmem'; self.wr = regs(ops[0]); self.rd = regs(ops[1])
        elif op.startswith('buffer_load'):
            self.kind = 'vmem'
            if 'lds' in mods:
                self.rd = set().union(*[regs(o) for o in ops]) | {'m0'}; self.kind = 'dma'
            else:
                self.wr = regs(ops[0]); self.rd = set().union(*[regs(o) for o in ops[1:]])
        elif op.startswith('buffer_store'):
            self.kind = 'store'; self.rd = set().union(*[regs(o) for o in ops]); self.ab = regs(ops[0]) if ('x4' in op or 'x3' in op) else set()
        elif op == 's_nop':
            self.kind = 'nop'; self.ws = int(ops[0], 0) + 1
        elif op.startswith('s_waitcnt') or op in ('s_barrier', 's_endpgm', 's_setprio', 's_sleep') or op.startswith('s_cbranch') or op == 's_branch':
            self.kind = 'ctl'
        elif op.startswith('s_'):
            self.kind = 'salu'
            if op.startswith('s_cmp'):
                self.rd = set().union(*[regs(o) for o in ops])
            else:
                self.wr = regs(ops[0]); self.rd = set().union(*[regs(o) for o in ops[1:]]) if len(ops) > 1 else set()
        else:
            raise ValueError('unknown op ' + text)

VALUK = ('valu', 'trans', 'perm', 'rdlane')

def need(p, c):
    n = 0
    if p.kind in VALUK:
        vw = {r for r in p.wr if r[0] in 'va' and r != 'vcc'}
        sw = {r for r in p.wr if r[0] == 's' or r == 'vcc'}
        if c.kind == 'mfma' and vw & c.rd: n = max(n, 2)
        if c.kind == 'perm' and vw & c.rd: n = max(n, 2)
        if c.kind == 'rdlane' and vw & c.rd: n = max(n, 1)
        if p.kind == 'trans' and c.kind in ('valu', 'perm', 'rdlane') and vw & c.rd: n = max(n, 1)
        if sw & c.rd:
            if c.kind in VALUK: n = max(n, 2)
            if c.kind in ('vmem', 'dma', 'store'): n = max(n, 5)
    if p.kind == 'mfma':
        if c.kind == 'mfma':
            if p.wr & c.ab: n = max(n, 8)
            if p.wr & c.srcc and p.wr != c.srcc: n = max(n, 6)
        elif c.kind in VALUK:
            if p.wr & (c.rd | c.wr): n = max(n, 8)
            if p.srcc & c.wr: n = max(n, 3)
        elif c.kind in ('ds', 'vmem', 'dma', 'store'):
            if p.wr & (c.rd | c.wr): n = max(n, 8)
    if p.kind == 'salu' and 'm0' in p.wr and c.kind == 'dma': n = max(n, 1)
    if p.kind == 'store' and p.ab & c.wr:
        n = max(n, 2 if c.kind in VALUK else 1)
    return n

def check(seq, fix=False, start=0):
    out = list(seq[:start]); problems = []
    for idx in range(start, len(seq)):
        c = seq[idx]
        if c.kind != 'label':
            dist = 0; short = 0
            for p in reversed(out):
                if dist >= 8: break
                k = need(p, c)
                if k > dist: short = max(short, k - dist); why = p
                dist += p.ws
            if short:
                if fix: out.append(I(f's_nop {short-1}'))
                else: problems.append((why.text, c.text, short))
        out.append(c)
    return out, problems
```

```python
import sys, struct
from asmlib import I, R, check, regs

NAME = 'standalone__mha_softmax__near_ridge'
LOG2E = 1.4426950408889634
CSC = LOG2E * (128 ** -0.5)
def fbits(x): return struct.unpack('<I', struct.pack('<f', x))[0]

class Cfg:
    sm5 = ()
    sm4 = (0, 1, 2, 3)
    diag = False
    margin = 12
    qnt = ' nt'
    ont = ''
    thr_exp = 32
    dma_space = 2
    nodma = False
    nobar = False
    nods = False

SQ, SK, SV, SO = 12, 16, 20, 24
sWAVE, sCNT, sOFF, sMODE, sC, sT0, sT1, sQOFF = 28, 29, 30, 31, 32, 34, 35, 36
sWS = 40
sST = 48
LDS_V = 65536
LDS_FLAG = 131072

vS = 8
vNM = 16
vL = 36
vIDX = 41
vAK = 42
vAV = 46
vP = 54
vO = 96
aQ = 0; aK = 80; aV = 144; aL = 208; aONE = 228

def Oreg(j, dt): return vO + (j * 8 + dt) * 4
def Qreg(j, s): return aQ + (j * 4 + s) * 4
def Kreg(buf, a, s): return aK + buf * 32 + (a * 4 + s) * 4
def Vreg(buf, dt): return aV + buf * 32 + dt * 4

class Wave:
    def __init__(self, cfg, NT, loader):
        self.cfg = cfg; self.NT = NT; self.loader = loader
        self.sm = tuple(cfg.sm4 if NT == 4 else cfg.sm5)
        self.pded = {j: vP + 8 + 8 * i for i, j in enumerate(self.sm)}
        assert vP + 8 + 8 * len(self.sm) <= vO or len(self.sm) == NT
        if len(self.sm) == NT: self.pded = {j: vP + 8 * i for i, j in enumerate(self.sm)}
        self.vDK = Oreg(4, 0) if loader else vP
        self.vDV = self.vDK + 4
        self.tag = f'w{NT}'

    def Preg(self, u):
        NT = self.NT; j = u % NT; h = (u // NT) % 2
        if j in self.pded: return self.pded[j] + 4 * h
        return vP + 4 * (u % 2)

    def mf_qk(self, u, a, s):
        NT = self.NT; j = u % NT; hh = (u // NT)
        d = R('v', vS + 4 * a, 4)
        c = R('v', vNM + 4 * j, 4) if s == 0 else d
        return I(f'v_mfma_f32_16x16x32_bf16 {d}, {R("a", Kreg(hh % 2, a, s), 4)}, {R("a", Qreg(j, s), 4)}, {c}')
    def mf_pv(self, u, dt):
        NT = self.NT; j = u % NT; hh = (u // NT)
        o = R('v', Oreg(j, dt), 4)
        return I(f'v_mfma_f32_16x16x32_bf16 {o}, {R("a", Vreg(hh % 2, dt), 4)}, {R("v", self.Preg(u), 4)}, {o}')
    def mf_sum(self, u):
        j = u % self.NT
        return I(f'v_smfmac_f32_16x16x64_bf16 {R("a", aL + 4 * j, 4)}, {R("a", aONE, 4)}, {R("v", self.pded[j], 8)}, v{vIDX}')
    def op_exp(self, r): return I(f'v_exp_f32 v{vS + r}, v{vS + r}')
    def op_add(self, u, r):
        j = u % self.NT
        return I(f'v_add_f32 v{vL + j}, v{vL + j}, v{vS + r}')
    def op_cvt(self, u, r):
        return I(f'v_cvt_pk_bf16_f32 v{self.Preg(u) + r // 2}, v{vS + r - 1}, v{vS + r}')
    def ds_k(self, n, a, s):
        off = ((n // 2) % 4) * 16384 + (n % 2) * 8192 + a * 4096
        return I(f'ds_read_b128 {R("a", Kreg(n % 2, a, s), 4)}, v{vAK + s} offset:{off}')
    def ds_v(self, n, dt, a):
        off = ((n // 2) % 4) * 16384 + (n % 2) * 8192 + a * 4096
        return I(f'ds_read_b64_tr_b16 {R("a", Vreg(n % 2, dt) + 2 * a, 2)}, v{vAV + dt} offset:{off}')
    def dma(self, isv, i):
        srd = SV if isv else SK
        vo = self.vDV + (i & 1) if isv else self.vDK + i
        return I(f'buffer_load_dwordx4 v{vo}, s[{srd}:{srd+3}], s{sOFF} offen offset:{i*1024} nt lds')

    def build_loop(self):
        cfg = self.cfg; NT = self.NT
        NU = 8 * NT; L = NU * 16
        mf = [None] * L; extra = {}
        sc = [[] for _ in range(L)]; mem = [[] for _ in range(L)]; va = [[] for _ in range(L)]
        load = [0] * L
        for u in range(NU):
            b = 16 * u
            for s in range(4):
                mf[b + s] = self.mf_qk(u, 0, s); mf[b + 8 + s] = self.mf_qk(u, 1, s)
                mf[b + 4 + s] = self.mf_pv((u - 2) % NU, 4 + s); mf[b + 12 + s] = self.mf_pv((u - 1) % NU, s)
            x = (u - 1) % NU
            if (x % NT) in self.sm and (x // NT) % 2 == 1: extra[b + 15] = self.mf_sum(x)
            for r in range(8):
                g = (b + 8 + 2 * r) % L
                va[g].append(self.op_exp(r)); load[g] += 8
                g1 = (g + 1) % L
                if (u % NT) not in self.sm: va[g1].append(self.op_add(u, r)); load[g1] += 4
                if r % 2: va[g1].append(self.op_cvt(u, r)); load[g1] += 4
        bar = {}
        for n in range(1, 8, 2):
            g = n * NT * 16
            if self.loader: sc[g].append(I('s_waitcnt vmcnt(32)'))
            sc[g].append(I('s_barrier')); bar[n] = g
        self.pre_dma = []
        if self.loader:
            for n in range(1, 8, 2):
                p = (n + 1) // 2; slot = (p + 2) % 4
                def rec(pos, ins):
                    if n == 7 and pos < L: self.pre_dma.append(ins)
                    return ins
                g = bar[n] + 1
                for grp in range(4):
                    for isv in (0, 1):
                        base = (LDS_V if isv else 0) + slot * 16384 + grp * 4096
                        first = True
                        for i in range(4):
                            while load[g % L] + 4 > 8 or (first and len(sc[(g - 1) % L]) >= 1): g += 1
                            if first: sc[(g - 1) % L].append(rec(g - 1, I(f's_mov_b32 m0, {base}'))); first = False
                            mem[g % L].append(rec(g, self.dma(isv, i))); load[g % L] += 4
                            g += cfg.dma_space
                    gg = g - cfg.dma_space + 1
                    if gg % L in (L - 2, L - 1): gg += L - gg % L
                    sc[gg % L].append(rec(gg, I(f's_add_u32 s{sOFF}, s{sOFF}, 4096')))
                    g = max(g, gg + 2)
                assert g - bar[n] < 2 * NT * 16 - 4, (g - bar[n])
        ops = []
        for n in range(1, 9):
            for a in range(2):
                for s in range(4):
                    e = (n - 1) * NT * 16 + (1 if (n - 1) % 2 == 1 else 0)
                    l = n * NT * 16 + 8 * a + s - cfg.margin
                    ops.append((l, e, self.ds_k(n, a, s), n))
            for dt in range(8):
                for a in range(2):
                    if dt < 4:
                        e = (n - 1) * NT * 16 + 12 + dt; l = (n * NT + 1) * 16 + 12 + dt - cfg.margin
                    else:
                        e = ((n - 1) * NT + 1) * 16 + dt; l = (n * NT + 2) * 16 + dt - cfg.margin
                    ops.append((l, e, self.ds_v(n, dt, a), n))
        ops.sort(key=lambda x: (x[0], x[1]))
        self.pre_ds = []
        over = 0
        cursor = 0
        for l, e, ins, n in ops:
            pos = None
            for g in range(e, l + 1):
                if load[g % L] + 4 <= 8: pos = g; break
            if pos is None:
                pos = min(range(e, l + 1), key=lambda g: (load[g % L], 0 if mem[g % L] else 1, -g)); over += 1
            mem[pos % L].append(ins); load[pos % L] += 4
            if n == 8 and pos < L: self.pre_ds.append(ins)
        self.over = over
        sc[L - 3].append(I(f's_sub_u32 s{sCNT}, s{sCNT}, 1'))
        sc[L - 2].append(I(f's_cmp_lg_u32 s{sCNT}, 0'))
        for g in (L - 2, L - 1):
            assert all(not (x.kind == 'salu' and 'add' in x.text) for x in sc[g][1:] + (sc[L-1] if g == L - 1 else [])), 'scc clobber'
        gaps = []
        for g in range(L):
            gaps.append([mf[g], sc[g], mem[g], va[g]])
            if g in extra: gaps.append([extra[g], [], [], []])
        self.insert_waits(gaps)
        body = []
        for m, s, me, v in gaps: body += [m] + s + me + v
        if cfg.nodma: body = [x for x in body if x.kind != 'dma']
        if cfg.nobar: body = [x for x in body if x.text != 's_barrier']
        if cfg.nods: body = [x for x in body if x.kind != 'ds']
        return body

    def insert_waits(self, gaps):
        n = len(gaps)
        outst = []
        for rnd in range(2):
            for gi in range(n):
                m, s, me, v = gaps[gi]
                nxt = gaps[(gi + 1) % n][0]
                k = max([i for i, (_, w) in enumerate(outst) if w & nxt.rd], default=-1)
                assert not any(x.wr & nxt.rd for x in me), 'load right before use'
                have = [x for x in s if x.text.startswith('s_waitcnt lgkmcnt')]
                t = rnd * n + gi
                if k >= 0:
                    req = len(outst) - 1 - k
                    recent = sum(1 for (g0, _) in outst if t - g0 <= 10)
                    N = min(req, recent, 15)
                    if have:
                        old = int(have[0].text.split('(')[1].rstrip(')'))
                        N = min(N, old); s.remove(have[0])
                    s.insert(0, I(f's_waitcnt lgkmcnt({N})'))
                    outst = outst[len(outst) - N:] if N else []
                elif have:
                    N = int(have[0].text.split('(')[1].rstrip(')'))
                    if len(outst) > N: outst = outst[len(outst) - N:] if N else []
                for x in me:
                    if x.kind == 'ds': outst.append((t, x.wr))

    def drain(self):
        NT = self.NT; NU = 8 * NT; U = NU - 1
        o = [I('s_waitcnt lgkmcnt(0)')]
        pv2 = [self.mf_pv(U - 1, 4 + s) for s in range(4)]
        for i, r in enumerate(range(4, 8)):
            o.append(self.op_exp(r)); o.append(pv2[i])
            if (U % NT) not in self.sm: o.append(self.op_add(U, r))
            if r % 2: o.append(self.op_cvt(U, r))
        for dt in range(8): o.append(self.mf_pv(U, dt))
        if (U % NT) in self.sm: o.append(self.mf_sum(U))
        return o

    def stamp(self, k):
        if not self.cfg.diag: return []
        return [I(f's_memtime s[{sST + 2*k}:{sST + 2*k + 1}]')]

    def xmax(self, x, t, op='v_max_f32'):
        o = []
        for sw in ('v_permlane16_swap_b32', 'v_permlane32_swap_b32'):
            o += [I(f'v_mov_b32 v{t}, v{x}'), I(f'{sw} v{x}, v{t}'), I(f'{op} v{x}, v{x}, v{t}')]
        return o

    def emit(self):
        cfg = self.cfg; NT = self.NT; tg = self.tag
        body = self.build_loop()
        pro = []; A = lambda t: pro.append(I(t))
        A(f'L_start_{tg}:')
        pro += self.stamp(7)
        for i in range(4):
            A(f'v_add_u32 v4, {4*i}, v2'); A('v_xor_b32 v4, v4, v3'); A('v_lshlrev_b32 v4, 4, v4')
            A(f'v_lshl_add_u32 v{self.vDK + i}, v2, 8, v4')
        for i in range(2):
            A(f'v_add_u32 v4, {4*i}, v2'); A('v_lshlrev_b32 v4, 1, v4'); A('v_xor_b32 v4, v4, v3'); A('v_lshlrev_b32 v4, 4, v4')
            A(f'v_lshl_add_u32 v{self.vDV + i}, v2, 8, v4')
        A(f's_lshl_b32 s{sOFF}, s{sWAVE}, 12')
        A(f's_mov_b32 m0, s{sOFF}')
        A('s_nop 0')
        for i in range(4): pro.append(self.dma(0, i))
        A(f's_cmp_lg_u32 s{sMODE}, 0'); A(f's_cbranch_scc1 L_noq_{tg}')
        for j in range(NT):
            A(f's_add_u32 s{sT0}, s{sQOFF}, {j*4096}')
            for s in range(4):
                A(f'buffer_load_dwordx4 {R("a", Qreg(j, s), 4)}, v5, s[{SQ}:{SQ+3}], s{sT0} offen offset:{64*s}{cfg.qnt}')
        A(f'L_noq_{tg}:')
        A(f's_add_u32 m0, s{sOFF}, {LDS_V}')
        A('s_nop 0')
        for i in range(4): pro.append(self.dma(1, i))
        def tile_dma(slot):
            for grp in range(4):
                for isv in (0, 1):
                    A(f's_mov_b32 m0, {(LDS_V if isv else 0) + slot * 16384 + grp * 4096}')
                    A('s_nop 0')
                    for i in range(4): pro.append(self.dma(isv, i))
                A(f's_add_u32 s{sOFF}, s{sOFF}, 4096')
        extra_vm = 0
        if self.loader:
            A(f's_mov_b32 s{sOFF}, 16384')
            tile_dma(1); extra_vm = 32
        pro += self.stamp(8)
        for r in range(NT * 32): A(f'v_mov_b32 v{vO + r}, 0')
        for j in range(NT): A(f'v_mov_b32 v{vL + j}, 0')
        for j in self.sm:
            for r in range(4): A(f'v_accvgpr_write_b32 a{aL + 4*j + r}, 0')
        for r in range(32): A(f'v_accvgpr_write_b32 a{Vreg(1, 0) + r}, 0')
        for r in range(vP, vO): A(f'v_mov_b32 v{r}, 0')
        A(f's_mov_b32 s{sCNT}, 8')
        A(f's_cmp_lg_u32 s{sMODE}, 0'); A(f's_cbranch_scc1 L_re_{tg}')
        pro += self.stamp(9)
        A(f's_waitcnt vmcnt({4*NT + 4 + extra_vm})')
        pro += self.stamp(10)
        A('s_barrier')
        pro += self.stamp(11)
        kds = [x for x in self.pre_ds if 'b128' in x.text]
        vds = [x for x in self.pre_ds if 'b128' not in x.text]
        assert len(kds) == 8
        pro += kds
        for j in range(NT):
            A(f's_waitcnt vmcnt({4*(NT-1-j) + 4 + extra_vm})')
            pro += self.stamp(12 + j)
            for r in range(16):
                a = Qreg(j, 0) + r; t = vS + 2 * (r % 4)
                A(f'v_accvgpr_read_b32 v4, a{a}')
                A(f'v_lshlrev_b32 v{t}, 16, v4'); A(f'v_and_b32 v{t+1}, 0xffff0000, v4')
                A(f'v_pk_mul_f32 v[{t}:{t+1}], v[{t}:{t+1}], s[{sC}:{sC+1}]')
                A(f'v_cvt_pk_bf16_f32 v4, v{t}, v{t+1}')
                A(f'v_accvgpr_write_b32 a{a}, v4')
            if j == 0: A('s_waitcnt lgkmcnt(0)')
            nm = vNM + 4 * j
            for s in range(4):
                A(f'v_mfma_f32_16x16x32_bf16 {R("v", nm, 4)}, {R("a", Kreg(0, 0, s), 4)}, {R("a", Qreg(j, s), 4)}, {"0" if s == 0 else R("v", nm, 4)}')
        for j in range(NT):
            nm = vNM + 4 * j
            A(f'v_max3_f32 v{nm}, v{nm}, v{nm+1}, v{nm+2}'); A(f'v_max_f32 v{nm}, v{nm}, v{nm+3}')
            pro.extend(self.xmax(nm, nm + 1))
            for r in (1, 2, 3, 0): A(f'v_sub_f32 v{nm + r}, 0, v{nm}')
        pro += self.stamp(17)
        A(f's_waitcnt vmcnt({extra_vm})')
        pro += self.stamp(18)
        A('s_barrier')
        pro += self.stamp(19)
        A(f's_branch L_go_{tg}')
        A(f'L_re_{tg}:')
        A(f's_waitcnt vmcnt({extra_vm})')
        A('s_barrier')
        pro += kds
        A(f'L_go_{tg}:')
        pro += vds
        pro += self.pre_dma
        for r in range(4, 8): A(f'v_mov_b32 v{vS + r}, 0xf149f2ca')
        A('s_waitcnt lgkmcnt(0)')
        pro += self.stamp(1)
        pro, _ = check(pro, fix=True)
        _, prob = check(pro[-12:] + body + body)
        assert not prob, prob[:5]
        tail = self.stamp(2) + self.drain()
        tail += self.epilogue()
        full, _ = check(body[-24:] + tail, fix=True, start=24)
        tail = full[24:]
        out = pro + [I('.p2align 6'), I(f'L_loop_{tg}:')] + body + [I(f's_cbranch_scc1 L_loop_{tg}')] + tail
        return out

    def epilogue(self):
        cfg = self.cfg; NT = self.NT; tg = self.tag
        o = []; A = lambda t: o.append(I(t))
        A(f's_mov_b64 s[{sT0}:{sT0+1}], 0')
        A(f's_mov_b32 s{sCNT}, {(127 + cfg.thr_exp) << 23}')
        T = vP
        for j in range(NT):
            l = vL + j
            if j in self.sm:
                A(f'v_accvgpr_read_b32 v{l}, a{aL + 4*j}'); A(f'v_accvgpr_read_b32 v{T}, a{aL + 4*j + 1}')
                A(f'v_add_f32 v{l}, v{l}, v{T}')
            else:
                o.extend(self.xmax(l, T, 'v_add_f32'))
            A(f'v_cmp_nlt_f32 vcc, v{l}, s{sCNT}')
            A(f'v_rcp_f32 v{T+2}, v{l}')
            A(f's_or_b64 s[{sT0}:{sT0+1}], s[{sT0}:{sT0+1}], vcc')
            A(f's_add_u32 s{sOFF}, s{sQOFF}, {j*4096}')
            for e in range(4):
                b = Oreg(j, 2 * e); d = T + 4 + 4 * (e % 2)
                for r in range(0, 8, 2):
                    A(f'v_pk_mul_f32 v[{b+r}:{b+r+1}], v[{b+r}:{b+r+1}], v[{T+2}:{T+3}] op_sel_hi:[1,0]')
                for r in range(4):
                    A(f'v_cvt_pk_bf16_f32 v{d+r}, v{b+2*r}, v{b+2*r+1}')
                A(f'v_permlane16_swap_b32 v{d}, v{d+2}'); A(f'v_permlane16_swap_b32 v{d+1}, v{d+3}')
                A(f'buffer_store_dwordx4 v[{d}:{d+3}], v6, s[{SO}:{SO+3}], s{sOFF} offen offset:{64*e}{cfg.ont}')
        o += self.stamp(3)
        A(f's_cmp_lg_u32 s{sMODE}, 0'); A('s_cbranch_scc1 L_fin')
        A(f's_cmp_eq_u64 s[{sT0}:{sT0+1}], 0'); A(f's_cbranch_scc1 L_ok_{tg}')
        A(f'v_mov_b32 v4, 1'); A(f'ds_write_b32 v7, v4')
        A(f'L_ok_{tg}:')
        A('s_waitcnt lgkmcnt(0)'); A('s_barrier')
        A('ds_read_b32 v4, v7'); A('s_waitcnt lgkmcnt(0)')
        A(f'v_readfirstlane_b32 s{sT0}, v4'); A('s_nop 3')
        A(f's_cmp_eq_u32 s{sT0}, 0'); A('s_cbranch_scc1 L_fin')
        A('s_waitcnt vmcnt(0)')
        A(f's_mov_b32 s{sMODE}, 1'); A(f's_mov_b32 s{sOFF}, 0')
        for j in range(NT): A(f'v_mov_b32 v{vL + j}, 0xff800000')
        A(f'L_slow_{tg}:')
        for s in range(4):
            A(f'buffer_load_dwordx4 {R("a", Kreg(0, 0, s), 4)}, v5, s[{SK}:{SK+3}], s{sOFF} offen offset:{64*s}')
        A('s_waitcnt vmcnt(0)')
        for j in range(NT):
            nm = vNM + 4 * j
            for s in range(4):
                A(f'v_mfma_f32_16x16x32_bf16 {R("v", nm, 4)}, {R("a", Kreg(0, 0, s), 4)}, {R("a", Qreg(j, s), 4)}, {"0" if s == 0 else R("v", nm, 4)}')
        A('s_nop 7')
        for j in range(NT):
            nm = vNM + 4 * j
            A(f'v_max3_f32 v{vL+j}, v{vL+j}, v{nm}, v{nm+1}'); A(f'v_max3_f32 v{vL+j}, v{vL+j}, v{nm+2}, v{nm+3}')
        A(f's_add_u32 s{sOFF}, s{sOFF}, 4096'); A(f's_cmp_lt_u32 s{sOFF}, 524288'); A('s_nop 3'); A(f's_cbranch_scc1 L_slow_{tg}')
        for j in range(NT):
            nm = vNM + 4 * j
            o.extend(self.xmax(vL + j, nm))
            for r in range(4): A(f'v_sub_f32 v{nm + r}, 0, v{vL + j}')
        A('s_barrier')
        A(f's_branch L_start_{tg}')
        return o

def generate(cfg):
    H = []; A = lambda t: H.append(I(t))
    A('s_cmp_ge_u32 s2, 256'); A('s_cbranch_scc1 L_end')
    A('s_load_dwordx4 s[4:7], s[0:1], 0'); A('s_load_dwordx4 s[8:11], s[0:1], 16')
    if cfg.diag:
        A(f's_load_dwordx2 s[{sWS}:{sWS+1}], s[0:1], 40'); A(f's_memtime s[{sST}:{sST+1}]'); A(f's_memrealtime s[{sST+8}:{sST+9}]')
    A('v_lshrrev_b32 v4, 6, v0'); A('v_and_b32 v1, 63, v0'); A(f'v_readfirstlane_b32 s{sWAVE}, v4')
    A('v_lshrrev_b32 v2, 4, v1'); A('v_and_b32 v3, 15, v1')
    A('v_lshlrev_b32 v5, 8, v3'); A('v_lshl_add_u32 v5, v2, 4, v5')
    A('v_and_b32 v4, 1, v2'); A('v_lshlrev_b32 v4, 5, v4'); A('v_lshrrev_b32 v6, 1, v2'); A('v_lshl_add_u32 v6, v6, 4, v4')
    A('v_lshl_add_u32 v6, v3, 8, v6')
    A(f'v_mov_b32 v7, {LDS_FLAG}')
    for s in range(4):
        A(f'v_add_u32 v4, {4*s}, v2'); A('v_xor_b32 v4, v4, v3'); A('v_lshlrev_b32 v4, 4, v4'); A(f'v_lshl_add_u32 v{vAK+s}, v3, 8, v4')
    A(f'v_lshrrev_b32 v{vS}, 2, v1')
    A(f'v_and_b32 v{vS+1}, 7, v{vS}'); A(f'v_lshlrev_b32 v{vS+1}, 1, v{vS+1}')
    A(f'v_bfe_u32 v{vS+2}, v1, 1, 1')
    A(f'v_and_b32 v{vS+3}, 1, v1'); A(f'v_lshlrev_b32 v{vS+3}, 3, v{vS+3}')
    A(f'v_lshl_add_u32 v{vS+3}, v{vS}, 8, v{vS+3}'); A(f'v_add_u32 v{vS+3}, {LDS_V}, v{vS+3}')
    for dt in range(8):
        A(f'v_add_u32 v4, {2*dt}, v{vS+2}'); A(f'v_xor_b32 v4, v4, v{vS+1}'); A(f'v_lshl_add_u32 v{vAV+dt}, v4, 4, v{vS+3}')
    A('v_and_b32 v4, 1, v1'); A(f'v_mov_b32 v{vS}, 0xaaaaaaaa'); A(f'v_mul_lo_u32 v4, v4, v{vS}'); A(f'v_add_u32 v{vIDX}, 0x44444444, v4')
    A('v_mov_b32 v4, 0x3f803f80')
    for r in range(4): A(f'v_accvgpr_write_b32 a{aONE + r}, v4')
    A('v_mov_b32 v4, 0'); A('ds_write_b32 v7, v4')
    A(f's_mov_b32 s{sC}, {fbits(CSC)}'); A(f's_mov_b32 s{sC+1}, {fbits(CSC)}')
    A(f's_mov_b32 s{sMODE}, 0')
    A(f's_mul_i32 s{sQOFF}, s{sWAVE}, {80*256}')
    A(f's_mul_i32 s{sT0}, s2, 77824'); A(f's_lshl_b32 s{sT1}, s2, 19')
    A('s_waitcnt lgkmcnt(0)')
    for srd, ptr, off, n in ((SQ, 4, sT0, 77824), (SK, 6, sT1, 524288), (SV, 8, sT1, 524288), (SO, 10, sT0, 77824)):
        A(f's_add_u32 s{srd}, s{ptr}, s{off}'); A(f's_addc_u32 s{srd+1}, s{ptr+1}, 0')
        A(f's_mov_b32 s{srd+2}, {n}'); A(f's_mov_b32 s{srd+3}, 0x20000')
    if cfg.diag:
        A(f's_mov_b32 s{sWS+2}, 0x100000'); A(f's_mov_b32 s{sWS+3}, 0x20000')
    A(f's_cmp_eq_u32 s{sWAVE}, 3'); A('s_cbranch_scc1 L_start_w4')
    H, _ = check(H, fix=True)
    w5 = Wave(cfg, 5, False); w4 = Wave(cfg, 4, True)
    c5 = w5.emit(); c4 = w4.emit()
    F = []; A = lambda t: F.append(I(t))
    A('L_fin:')
    if cfg.diag:
        A('s_waitcnt vmcnt(0)')
        A(f's_memtime s[{sST+10}:{sST+11}]'); A(f's_memrealtime s[{sST+12}:{sST+13}]'); A('s_waitcnt lgkmcnt(0)')
        for i in range(48): A(f'v_mov_b32 v{16+i}, s{sST+i}')
        A(f's_lshl_b32 s{sT0}, s2, 2'); A(f's_add_u32 s{sT0}, s{sT0}, s{sWAVE}'); A(f's_lshl_b32 s{sT0}, s{sT0}, 8')
        A(f'v_mov_b32 v4, s{sT0}'); A('s_mov_b64 exec, 1')
        for i in range(12): A(f'buffer_store_dwordx4 v[{16+4*i}:{19+4*i}], v4, s[{sWS}:{sWS+3}], 0 offen offset:{16*i}')
    A('L_end:'); A('s_endpgm')
    hdr = open('cdna_kernels/' + NAME + '.s.ref').read().split('\n') if False else []
    lines = ['; attention forward, one (batch, head) per workgroup; generated by a hand-written scheduler script',
             f'; @launch grid=(256,1,1) block=(256,1,1) lds={LDS_FLAG + 64}',
             '.amdgcn_target "amdgcn-amd-amdhsa--gfx950"', '.text', f'.globl {NAME}_kernel', '.p2align 8',
             f'.type {NAME}_kernel,@function', f'{NAME}_kernel:']
    for x in H + c5 + c4 + F:
        lines.append(x.text if x.kind == 'label' else '    ' + x.text)
    lines += ['.section .rodata,"a"', '.p2align 6', f'.amdhsa_kernel {NAME}_kernel',
              '  .amdhsa_next_free_vgpr 512', '  .amdhsa_next_free_sgpr 102', '  .amdhsa_accum_offset 256',
              '  .amdhsa_group_segment_fixed_size 0', '  .amdhsa_kernarg_size 48', '  .amdhsa_user_sgpr_count 2',
              '  .amdhsa_user_sgpr_kernarg_segment_ptr 1', '  .amdhsa_system_sgpr_workgroup_id_x 1',
              '  .amdhsa_float_denorm_mode_32 3', '.end_amdhsa_kernel']
    sys.stderr.write(f'over5={w5.over} over4={w4.over} n5={len(c5)} n4={len(c4)}\n')
    return '\n'.join(lines) + '\n'

def mk(**kw):
    c = Cfg()
    for k, v in kw.items():
        assert hasattr(c, k), k
        setattr(c, k, v)
    return c

if __name__ == '__main__':
    out = sys.argv[1]
    kw = eval('dict(' + (sys.argv[2] if len(sys.argv) > 2 else '') + ')')
    open(out, 'w').write(generate(mk(**kw)))
```

```python
import sys, struct
from asmlib import I, R, check, regs

NAME = 'standalone__mha_softmax__near_ridge'
LOG2E = 1.4426950408889634
CSC = LOG2E * (128 ** -0.5)
def fbits(x): return struct.unpack('<I', struct.pack('<f', x))[0]

class Cfg:
    sm5 = ()
    sm4 = (0, 1, 2, 3)
    diag = False
    margin = 12
    qnt = ' nt'
    ont = ''
    thr_exp = 32
    dma_space = 4
    dma_start = 2
    margin_b = 8
    ahead = 3
    trace = False
    nodma = False
    nobar = False
    nods = False

SQ, SK, SV, SO = 12, 16, 20, 24
sWAVE, sCNT, sOFF, sMODE, sC, sT0, sT1, sQOFF = 28, 29, 30, 31, 32, 34, 35, 36
sWOFF, sQL, sOFFV = 37, 38, 39
sWS = 40
sST = 48
LDS_V = 65536
LDS_X = 131072
LDS_TOTAL = 163840

vS = 8
vNM = 16
vL = 36
vIDX = 41
vAK = 42
vAV = 46
vP = 54
vO = 96
aQ = 0; aK = 80; aV = 144; aL = 208; aONE = 228

def Oreg(j, dt): return vO + (j * 8 + dt) * 4
def Qreg(j, s): return aQ + (j * 4 + s) * 4
def Kreg(buf, a, s): return aK + buf * 32 + (a * 4 + s) * 4
def Vreg(buf, dt): return aV + buf * 32 + dt * 4

class Wave:
    def __init__(self, cfg, NT, loader):
        self.cfg = cfg; self.NT = NT; self.loader = loader
        self.sm = tuple(cfg.sm4 if NT == 4 else cfg.sm5)
        self.pded = {j: vP + 8 + 8 * i for i, j in enumerate(self.sm)}
        assert vP + 8 + 8 * len(self.sm) <= 94 or len(self.sm) == NT
        if len(self.sm) == NT: self.pded = {j: vP + 8 * i for i, j in enumerate(self.sm)}
        self.vDV = 94
        self.vDK = Oreg(4, 0) if loader else 90
        self.tag = f'w{NT}'

    def Preg(self, u):
        NT = self.NT; j = u % NT; h = (u // NT) % 2
        if j in self.pded: return self.pded[j] + 4 * h
        return vP + 4 * (u % 2)

    def mf_qk(self, u, a, s):
        NT = self.NT; j = u % NT; hh = (u // NT)
        d = R('v', vS + 4 * a, 4)
        c = R('v', vNM + 4 * j, 4) if s == 0 else d
        return I(f'v_mfma_f32_16x16x32_bf16 {d}, {R("a", Kreg(hh % 2, a, s), 4)}, {R("a", Qreg(j, s), 4)}, {c}')
    def mf_pv(self, u, dt):
        NT = self.NT; j = u % NT; hh = (u // NT)
        o = R('v', Oreg(j, dt), 4)
        return I(f'v_mfma_f32_16x16x32_bf16 {o}, {R("a", Vreg(hh % 2, dt), 4)}, {R("v", self.Preg(u), 4)}, {o}')
    def mf_sum(self, u):
        j = u % self.NT
        return I(f'v_smfmac_f32_16x16x64_bf16 {R("a", aL + 4 * j, 4)}, {R("a", aONE, 4)}, {R("v", self.pded[j], 8)}, v{vIDX}')
    def op_exp(self, r): return I(f'v_exp_f32 v{vS + r}, v{vS + r}')
    def op_add(self, u, r):
        j = u % self.NT
        return I(f'v_add_f32 v{vL + j}, v{vL + j}, v{vS + r}')
    def op_cvt(self, u, r):
        return I(f'v_cvt_pk_bf16_f32 v{self.Preg(u) + r // 2}, v{vS + r - 1}, v{vS + r}')
    def ds_k(self, n, a, s):
        off = ((n // 2) % 4) * 16384 + (n % 2) * 8192 + a * 4096
        return I(f'ds_read_b128 {R("a", Kreg(n % 2, a, s), 4)}, v{vAK + s} offset:{off}')
    def ds_v(self, n, dt, a):
        off = ((n // 2) % 4) * 16384 + (n % 2) * 8192 + a * 4096
        return I(f'ds_read_b64_tr_b16 {R("a", Vreg(n % 2, dt) + 2 * a, 2)}, v{vAV + dt} offset:{off}')
    def dma(self, isv, i):
        srd = SV if isv else SK
        vo = self.vDV + (i & 1) if isv else self.vDK + i
        return I(f'buffer_load_dwordx4 v{vo}, s[{srd}:{srd+3}], s{sOFFV if isv else sOFF} offen offset:{i*1024} nt lds')

    def groups(self, isv, slot):
        so = sOFFV if isv else sOFF
        return [(I(f's_mov_b32 m0, {(LDS_V if isv else 0) + slot * 16384 + g * 4096}'), [self.dma(isv, i) for i in range(4)],
                 I(f's_add_u32 s{so}, s{so}, 4096')) for g in range(4)]

    def build_loop(self):
        cfg = self.cfg; NT = self.NT
        NU = 8 * NT; L = NU * 16
        mf = [None] * L; extra = {}
        sc = [[] for _ in range(L)]; mem = [[] for _ in range(L)]; va = [[] for _ in range(L)]
        load = [0] * L
        for u in range(NU):
            b = 16 * u
            for s in range(4):
                mf[b + s] = self.mf_qk(u, 0, s); mf[b + 8 + s] = self.mf_qk(u, 1, s)
                mf[b + 4 + s] = self.mf_pv((u - 2) % NU, 4 + s); mf[b + 12 + s] = self.mf_pv((u - 1) % NU, s)
            x = (u - 1) % NU
            if (x % NT) in self.sm and (x // NT) % 2 == 1: extra[b + 15] = self.mf_sum(x)
            for r in range(8):
                g = (b + 8 + 2 * r) % L
                va[g].append(self.op_exp(r)); load[g] += 8
                g1 = (g + 1) % L
                if (u % NT) not in self.sm: va[g1].append(self.op_add(u, r)); load[g1] += 4
                if r % 2: va[g1].append(self.op_cvt(u, r)); load[g1] += 4
        bar = {}
        for n in range(1, 8, 2):
            g = n * NT * 16
            sc[g - 1].append(I(f's_waitcnt vmcnt({48 if self.loader else 0})'))
            sc[g].append(I('s_barrier')); bar[n] = g
        self.bar_gaps = set(bar.values())
        if cfg.diag and cfg.trace and self.loader:
            for n in range(1, 8, 2):
                g = bar[n]
                sc[g] += [I('s_memtime s[96:97]'), I('s_memrealtime s[98:99]'), I('s_waitcnt lgkmcnt(0)'),
                          I('s_mov_b32 m0, s100'), I('s_nop 0'), I('v_writelane_b32 v250, s96, m0'), I('v_writelane_b32 v251, s98, m0'), I('s_add_u32 s100, s100, 1')]
        self.pre_dma = []
        for n in (range(1, 8, 2) if self.loader else []):
            p = (n + 1) // 2
            g = bar[n] + cfg.dma_start
            def put(lst, pos, ins):
                lst[pos % L].append(ins)
                if n == 7 and pos < L: self.pre_dma.append(ins)
            def free_sc(pos): return not sc[pos % L] and pos % L not in (L - 3, L - 2, L - 1)
            k = 0
            for m0, dmas, post in self.groups(1, (p + 2) % 4) + self.groups(0, (p + 3) % 4):
                while not free_sc(g): g += 1
                put(sc, g, I('s_waitcnt vmcnt(59)')); g += 1
                while not free_sc(g): g += 1
                put(sc, g, m0); g += 1
                for d in dmas:
                    g = max(g, bar[n] + cfg.dma_start + 2 + int(k * cfg.dma_space)); k += 1
                    while load[g % L] + 4 > 8 or mem[g % L]: g += 1
                    put(mem, g, d); load[g % L] += 4
                    g += 1
                while not free_sc(g): g += 1
                put(sc, g, post); g += 1
            assert g - bar[n] < 2 * NT * 16 - 1, (g - bar[n])
        ops = []
        for n in range(1, 9):
            for a in range(2):
                for s in range(4):
                    e = (n - 1) * NT * 16 + (1 if (n - 1) % 2 == 1 else 0)
                    l = n * NT * 16 + 8 * a + s - cfg.margin
                    if n % 2: l = min(l, n * NT * 16 - 1 - cfg.margin_b)
                    ops.append((l, e, self.ds_k(n, a, s), n))
            for dt in range(8):
                for a in range(2):
                    if dt < 4:
                        e = (n - 1) * NT * 16 + 12 + dt; l = (n * NT + 1) * 16 + 12 + dt - cfg.margin
                    else:
                        e = ((n - 1) * NT + 1) * 16 + dt; l = (n * NT + 2) * 16 + dt - cfg.margin
                    ops.append((l, e, self.ds_v(n, dt, a), n))
        ops.sort(key=lambda x: (x[0], x[1]))
        self.pre_ds = []
        over = 0
        cursor = 0
        for l, e, ins, n in ops:
            pos = None
            for g in range(e, l + 1):
                if load[g % L] + 4 <= 8: pos = g; break
            if pos is None:
                pos = min(range(e, l + 1), key=lambda g: (load[g % L], 0 if mem[g % L] else 1, -g)); over += 1
            mem[pos % L].append(ins); load[pos % L] += 4
            if n == 8 and pos < L: self.pre_ds.append(ins)
        self.over = over
        sc[L - 3].append(I(f's_sub_u32 s{sCNT}, s{sCNT}, 1'))
        sc[L - 2].append(I(f's_cmp_lg_u32 s{sCNT}, 0'))
        gaps = []
        for g in range(L):
            gaps.append([mf[g], sc[g], mem[g], va[g]])
            if g in extra: gaps.append([extra[g], [], [], []])
        self.insert_waits(gaps)
        body = []
        for m, s, me, v in gaps: body += [m] + s + me + v
        if cfg.nodma: body = [x for x in body if x.kind != 'dma']
        if cfg.nobar: body = [x for x in body if x.text != 's_barrier']
        if cfg.nods: body = [x for x in body if x.kind != 'ds']
        return body

    def insert_waits(self, gaps):
        n = len(gaps)
        outst = []
        for rnd in range(2):
            for gi in range(n):
                m, s, me, v = gaps[gi]
                nxt = gaps[(gi + 1) % n][0]
                rd = set(nxt.rd)
                if any(x.text == 's_barrier' for x in gaps[(gi + 1) % n][1]):
                    rd |= {f'a{r}' for r in range(aK, aK + 64)}
                k = max([i for i, (_, w) in enumerate(outst) if w & rd], default=-1)
                assert not any(x.wr & rd for x in me), 'load right before use'
                have = [x for x in s if x.text.startswith('s_waitcnt lgkmcnt')]
                t = rnd * n + gi
                if k >= 0:
                    req = len(outst) - 1 - k
                    recent = sum(1 for (g0, _) in outst if t - g0 <= 10)
                    N = min(req, recent, 15)
                    if have:
                        old = int(have[0].text.split('(')[1].rstrip(')'))
                        N = min(N, old); s.remove(have[0])
                    s.insert(0, I(f's_waitcnt lgkmcnt({N})'))
                    outst = outst[len(outst) - N:] if N else []
                elif have:
                    N = int(have[0].text.split('(')[1].rstrip(')'))
                    if len(outst) > N: outst = outst[len(outst) - N:] if N else []
                for x in me:
                    if x.kind == 'ds': outst.append((t, x.wr))

    def drain(self):
        NT = self.NT; NU = 8 * NT; U = NU - 1
        o = [I('s_waitcnt lgkmcnt(0)')]
        pv2 = [self.mf_pv(U - 1, 4 + s) for s in range(4)]
        for i, r in enumerate(range(4, 8)):
            o.append(self.op_exp(r)); o.append(pv2[i])
            if (U % NT) not in self.sm: o.append(self.op_add(U, r))
            if r % 2: o.append(self.op_cvt(U, r))
        for dt in range(8): o.append(self.mf_pv(U, dt))
        if (U % NT) in self.sm: o.append(self.mf_sum(U))
        return o

    def stamp(self, k):
        if not self.cfg.diag: return []
        return [I(f's_memtime s[{sST + 2*k}:{sST + 2*k + 1}]')]

    def xmax(self, x, t, op='v_max_f32'):
        o = []
        for sw in ('v_permlane16_swap_b32', 'v_permlane32_swap_b32'):
            o += [I(f'v_mov_b32 v{t}, v{x}'), I(f'{sw} v{x}, v{t}'), I(f'{op} v{x}, v{x}, v{t}')]
        return o

    def late_setup(self):
        o = []; A = lambda t: o.append(I(t))
        for s in range(4):
            A(f'v_add_u32 v4, {4*s}, v2'); A('v_xor_b32 v4, v4, v3'); A('v_lshlrev_b32 v4, 4, v4'); A(f'v_lshl_add_u32 v{vAK+s}, v3, 8, v4')
        A(f'v_lshrrev_b32 v{vS}, 2, v1')
        A(f'v_and_b32 v{vS+1}, 7, v{vS}'); A(f'v_lshlrev_b32 v{vS+1}, 1, v{vS+1}')
        A(f'v_bfe_u32 v{vS+2}, v1, 1, 1')
        A(f'v_and_b32 v{vS+3}, 1, v1'); A(f'v_lshlrev_b32 v{vS+3}, 3, v{vS+3}')
        A(f'v_lshl_add_u32 v{vS+3}, v{vS}, 8, v{vS+3}'); A(f'v_add_u32 v{vS+3}, {LDS_V}, v{vS+3}')
        for dt in range(8):
            A(f'v_add_u32 v4, {2*dt}, v{vS+2}'); A(f'v_xor_b32 v4, v4, v{vS+1}'); A(f'v_lshl_add_u32 v{vAV+dt}, v4, 4, v{vS+3}')
        A('v_and_b32 v4, 1, v1'); A(f'v_mov_b32 v{vS}, 0xaaaaaaaa'); A(f'v_mul_lo_u32 v4, v4, v{vS}'); A(f'v_add_u32 v{vIDX}, 0x44444444, v4')
        A('v_mov_b32 v4, 0x3f803f80')
        for r in range(4): A(f'v_accvgpr_write_b32 a{aONE + r}, v4')
        return o

    def emit(self):
        cfg = self.cfg; NT = self.NT; tg = self.tag
        body = self.build_loop()
        pro = []; A = lambda t: pro.append(I(t))
        A(f'L_start_{tg}:')
        pro += self.stamp(7)
        for i in range(4):
            A(f'v_add_u32 v4, {4*i}, v2'); A('v_xor_b32 v4, v4, v3'); A('v_lshlrev_b32 v4, 4, v4')
            A(f'v_lshl_add_u32 v{self.vDK + i}, v2, 8, v4')
        for i in range(2):
            A(f'v_add_u32 v4, {4*i}, v2'); A('v_lshlrev_b32 v4, 1, v4'); A('v_xor_b32 v4, v4, v3'); A('v_lshlrev_b32 v4, 4, v4')
            A(f'v_lshl_add_u32 v{self.vDV + i}, v2, 8, v4')
        def r_kv(isv, t):
            so = sOFFV if isv else sOFF
            return [I(f's_add_u32 s{so}, s{sWOFF}, {t * 16384}'), I(f's_add_u32 m0, s{sWOFF}, {(LDS_V if isv else 0) + t * 16384}')] + \
                   [self.dma(isv, i) for i in range(4)]
        def r_q(j):
            o = [I(f's_add_u32 s{sT0}, s{sQOFF}, {j*4096}'),
                 I(f's_add_u32 m0, s{sQL}, {j*4096}') if j < 4 else I(f's_add_u32 m0, s{sWOFF}, {LDS_V + 2*16384}')]
            return o + [I(f'buffer_load_dwordx4 v{self.vDK + i}, s[{SQ}:{SQ+3}], s{sT0} offen offset:{1024*i}{cfg.qnt} lds') for i in range(4)]
        def k2():
            o = [I(f's_mov_b32 s{sOFF}, 32768'), I(f's_mov_b32 s{sOFFV}, 32768')]
            for m0, dmas, post in self.groups(0, 2): o += [m0] + dmas + [post]
            return o
        def init():
            o = self.late_setup()
            o += [I(f'v_mov_b32 v{vO + r}, 0') for r in range(NT * 32)]
            o += [I(f'v_mov_b32 v{vL + j}, 0') for j in range(NT)]
            o += [I(f'v_accvgpr_write_b32 a{aL + 4*j + r}, 0') for j in self.sm for r in range(4)]
            o += [I(f'v_accvgpr_write_b32 a{Vreg(1, 0) + r}, 0') for r in range(32)]
            o.append(I(f's_mov_b32 s{sCNT}, 8'))
            return o
        kds = [x for x in self.pre_ds if 'b128' in x.text]
        vds = [x for x in self.pre_ds if 'b128' not in x.text]
        assert len(kds) == 8
        A(f's_cmp_lg_u32 s{sMODE}, 0'); A(f's_cbranch_scc1 L_re_{tg}')
        rounds = [r_kv(0, 0)] + [r_q(j) for j in range(NT)] + [r_kv(1, 0), r_kv(0, 1), r_kv(1, 1)]
        issued = [0]
        def issue(upto):
            while issued[0] < min(upto, len(rounds)):
                pro.extend(rounds[issued[0]]); issued[0] += 1
        def wait_round(k):
            A(f's_waitcnt vmcnt({4 * (issued[0] - 1 - k)})')
        issue(cfg.ahead)
        pro += self.stamp(8)
        pro += init()
        for s_ in range(4):
            A(f'v_add_u32 v{vS + s_}, s{sQL}, v{vAK + s_}')
        A(f's_add_u32 s{sT1}, s{sWOFF}, {LDS_V + 2*16384}')
        for s_ in range(4):
            A(f'v_add_u32 v{vS + 4 + s_}, s{sT1}, v{vAK + s_}')
        pro += self.stamp(9)
        wait_round(0)
        pro += self.stamp(10)
        A('s_barrier')
        pro += kds
        issue(cfg.ahead + 1)
        pro += self.stamp(11)
        QT = vP; TT = vP + 16
        for j in range(NT):
            wait_round(1 + j)
            pro += self.stamp(12 + j)
            for s_ in range(4):
                if j < 4: A(f'ds_read_b128 {R("v", QT + 4*s_, 4)}, v{vS + s_} offset:{j*4096}')
                else: A(f'ds_read_b128 {R("v", QT + 4*s_, 4)}, v{vS + 4 + s_}')
            issue(cfg.ahead + 2 + j)
            for s_ in range(0, 4, 2):
                A(f's_waitcnt lgkmcnt({2 - s_})')
                rr = range(4 * s_, 4 * s_ + 8)
                for r in rr:
                    t = TT + 2 * (r % 8)
                    A(f'v_lshlrev_b32 v{t}, 16, v{QT + r}'); A(f'v_and_b32 v{t+1}, 0xffff0000, v{QT + r}')
                for r in rr:
                    t = TT + 2 * (r % 8)
                    A(f'v_pk_mul_f32 v[{t}:{t+1}], v[{t}:{t+1}], s[{sC}:{sC+1}]')
                for r in rr:
                    t = TT + 2 * (r % 8)
                    A(f'v_cvt_pk_bf16_f32 v{t}, v{t}, v{t+1}')
                for r in rr:
                    t = TT + 2 * (r % 8)
                    A(f'v_accvgpr_write_b32 a{Qreg(j, 0) + r}, v{t}')
            nm = vNM + 4 * j
            for s_ in range(4):
                A(f'v_mfma_f32_16x16x32_bf16 {R("v", nm, 4)}, {R("a", Kreg(0, 0, s_), 4)}, {R("a", Qreg(j, s_), 4)}, {"0" if s_ == 0 else R("v", nm, 4)}')
        issue(99)
        for r in range(vP, 90): A(f'v_mov_b32 v{r}, 0')
        steps = []
        for j in range(NT):
            nm = vNM + 4 * j
            st = [I(f'v_max3_f32 v{nm}, v{nm}, v{nm+1}, v{nm+2}'), I(f'v_max_f32 v{nm}, v{nm}, v{nm+3}')] + self.xmax(nm, nm + 1)
            st += [I(f'v_sub_f32 v{nm + r}, 0, v{nm}') for r in (1, 2, 3, 0)]
            steps.append(st)
        for k in range(len(steps[0])):
            for st in steps: pro.append(st[k])
        if self.loader: pro += k2()
        pro += self.stamp(17)
        A(f's_waitcnt vmcnt({8 + (16 if self.loader else 0)})')
        pro += self.stamp(18)
        A('s_barrier')
        pro += self.stamp(19)
        A(f's_branch L_go_{tg}')
        A(f'L_re_{tg}:')
        pro += r_kv(0, 0) + r_kv(1, 0) + r_kv(0, 1) + r_kv(1, 1)
        if self.loader: pro += k2()
        pro += init()
        for r in range(vP, 90): A(f'v_mov_b32 v{r}, 0')
        A(f's_waitcnt vmcnt({8 + (16 if self.loader else 0)})')
        A('s_barrier')
        pro += kds
        A(f'L_go_{tg}:')
        if len(self.sm) == 5:
            for r in range(90, 94): A(f'v_mov_b32 v{r}, 0')
        pro += vds
        pro += self.pre_dma
        for r in range(4, 8): A(f'v_mov_b32 v{vS + r}, 0xf149f2ca')
        A('s_waitcnt lgkmcnt(0)')
        pro += self.stamp(1)
        pro, _ = check(pro, fix=True)
        _, prob = check(pro[-12:] + body + body)
        assert not prob, prob[:5]
        tail = self.stamp(2) + self.drain()
        tail += self.epilogue()
        full, _ = check(body[-24:] + tail, fix=True, start=24)
        tail = full[24:]
        out = pro + [I('.p2align 6'), I(f'L_loop_{tg}:')] + body + [I(f's_cbranch_scc1 L_loop_{tg}')] + tail
        return out

    def epilogue(self):
        cfg = self.cfg; NT = self.NT; tg = self.tag
        o = []; A = lambda t: o.append(I(t))
        A(f's_mov_b64 s[{sT0}:{sT0+1}], 0')
        A(f's_mov_b32 s{sCNT}, {(127 + cfg.thr_exp) << 23}')
        T = vP
        W = vAV; RD = vAV + 4
        A(f's_lshl_b32 s{sOFF}, s{sWAVE}, 13'); A(f's_add_u32 s{sOFF}, s{sOFF}, {LDS_X}')
        A(f'v_mov_b32 v7, s{sOFF}')
        A('v_and_b32 v4, 1, v2'); A('v_lshlrev_b32 v4, 1, v4'); A(f'v_lshrrev_b32 v{T}, 1, v2'); A(f'v_add_u32 v4, v4, v{T}')
        A(f'v_lshl_add_u32 v{T}, v3, 8, v7'); A(f'v_lshl_add_u32 v{T+1}, v2, 8, v7')
        for e in range(4):
            A(f'v_add_u32 v{T+2}, {4*e}, v4'); A(f'v_xor_b32 v{T+2}, v{T+2}, v3'); A(f'v_lshl_add_u32 v{W+e}, v{T+2}, 4, v{T}')
            A(f'v_add_u32 v{T+2}, {4*e}, v2'); A(f'v_xor_b32 v{T+2}, v{T+2}, v3'); A(f'v_lshl_add_u32 v{RD+e}, v{T+2}, 4, v{T+1}')
        A('v_lshlrev_b32 v6, 4, v1')
        def flush(j):
            A(f's_add_u32 s{sOFF}, s{sQOFF}, {j*4096}')
            for e in range(4):
                A(f's_waitcnt lgkmcnt({3 - e})')
                A(f'buffer_store_dwordx4 {R("v", T + 12 + 4*e, 4)}, v6, s[{SO}:{SO+3}], s{sOFF} offen offset:{1024*e}{cfg.ont}')
        for j in range(NT):
            l = vL + j
            if j in self.sm:
                A(f'v_accvgpr_read_b32 v{l}, a{aL + 4*j}'); A(f'v_accvgpr_read_b32 v{T}, a{aL + 4*j + 1}')
                A(f'v_add_f32 v{l}, v{l}, v{T}')
            else:
                o.extend(self.xmax(l, T, 'v_add_f32'))
            A(f'v_cmp_nlt_f32 vcc, v{l}, s{sCNT}')
            A(f'v_rcp_f32 v{T+2}, v{l}')
            A(f's_or_b64 s[{sT0}:{sT0+1}], s[{sT0}:{sT0+1}], vcc')
            b0 = Oreg(j, 0)
            for r in range(0, 32, 2):
                A(f'v_pk_mul_f32 v[{b0+r}:{b0+r+1}], v[{b0+r}:{b0+r+1}], v[{T+2}:{T+3}] op_sel_hi:[1,0]')
            if j: flush(j - 1)
            for r in range(16):
                A(f'v_cvt_pk_bf16_f32 v{b0+r}, v{b0+2*r}, v{b0+2*r+1}')
            for e in range(4):
                d = b0 + 4 * e
                A(f'v_permlane16_swap_b32 v{d}, v{d+2}'); A(f'v_permlane16_swap_b32 v{d+1}, v{d+3}')
            for e in range(4):
                A(f'ds_write_b128 v{W+e}, {R("v", b0 + 4*e, 4)} offset:{(j % 2) * 4096}')
            for e in range(4):
                A(f'ds_read_b128 {R("v", T + 12 + 4*e, 4)}, v{RD+e} offset:{(j % 2) * 4096 + 1024*e}')
        flush(NT - 1)
        o += self.stamp(3)
        A(f's_cmp_lg_u32 s{sMODE}, 0'); A('s_cbranch_scc1 L_fin')
        A(f's_cmp_lg_u64 s[{sT0}:{sT0+1}], 0'); A(f's_cselect_b32 s{sT0}, 1, 0')
        A(f'v_mov_b32 v4, s{sT0}'); A(f'ds_write_b32 v7, v4')
        A('s_waitcnt lgkmcnt(0)'); A('s_barrier')
        A(f'v_and_b32 v4, 3, v1'); A(f'v_lshlrev_b32 v4, 13, v4'); A(f'v_add_u32 v4, {LDS_X}, v4')
        A('ds_read_b32 v4, v4'); A('s_waitcnt lgkmcnt(0)')
        A('v_cmp_ne_u32 vcc, 0, v4'); A('s_nop 3')
        A('s_cmp_eq_u64 vcc, 0'); A('s_cbranch_scc1 L_fin')
        A('s_waitcnt vmcnt(0)')
        A(f's_mov_b32 s{sMODE}, 1'); A(f's_mov_b32 s{sOFF}, 0')
        for j in range(NT): A(f'v_mov_b32 v{vL + j}, 0xff800000')
        A(f'L_slow_{tg}:')
        for s in range(4):
            A(f'buffer_load_dwordx4 {R("a", Kreg(0, 0, s), 4)}, v5, s[{SK}:{SK+3}], s{sOFF} offen offset:{64*s}')
        A('s_waitcnt vmcnt(0)')
        for j in range(NT):
            nm = vNM + 4 * j
            for s in range(4):
                A(f'v_mfma_f32_16x16x32_bf16 {R("v", nm, 4)}, {R("a", Kreg(0, 0, s), 4)}, {R("a", Qreg(j, s), 4)}, {"0" if s == 0 else R("v", nm, 4)}')
        A('s_nop 7')
        for j in range(NT):
            nm = vNM + 4 * j
            A(f'v_max3_f32 v{vL+j}, v{vL+j}, v{nm}, v{nm+1}'); A(f'v_max3_f32 v{vL+j}, v{vL+j}, v{nm+2}, v{nm+3}')
        A(f's_add_u32 s{sOFF}, s{sOFF}, 4096'); A(f's_cmp_lt_u32 s{sOFF}, 524288'); A('s_nop 3'); A(f's_cbranch_scc1 L_slow_{tg}')
        for j in range(NT):
            nm = vNM + 4 * j
            o.extend(self.xmax(vL + j, nm))
            for r in range(4): A(f'v_sub_f32 v{nm + r}, 0, v{vL + j}')
        A('s_barrier')
        A(f's_branch L_start_{tg}')
        return o

def generate(cfg):
    H = []; A = lambda t: H.append(I(t))
    A('s_cmp_ge_u32 s2, 256'); A('s_cbranch_scc1 L_end')
    A('s_load_dwordx4 s[4:7], s[0:1], 0'); A('s_load_dwordx4 s[8:11], s[0:1], 16')
    if cfg.diag:
        A(f's_load_dwordx2 s[{sWS}:{sWS+1}], s[0:1], 40'); A(f's_memtime s[{sST}:{sST+1}]'); A(f's_memrealtime s[{sST+8}:{sST+9}]')
    A('v_lshrrev_b32 v4, 6, v0'); A('v_and_b32 v1, 63, v0'); A(f'v_readfirstlane_b32 s{sWAVE}, v4')
    A('v_lshrrev_b32 v2, 4, v1'); A('v_and_b32 v3, 15, v1')
    A('v_lshlrev_b32 v5, 8, v3'); A('v_lshl_add_u32 v5, v2, 4, v5')
    A(f's_mov_b32 s{sC}, {fbits(CSC)}'); A(f's_mov_b32 s{sC+1}, {fbits(CSC)}')
    A(f's_mov_b32 s{sMODE}, 0')
    if cfg.diag: A('s_mov_b32 s100, 0')
    A(f's_mul_i32 s{sQOFF}, s{sWAVE}, {80*256}')
    A(f's_lshl_b32 s{sWOFF}, s{sWAVE}, 12')
    A(f's_lshl_b32 s{sQL}, s{sWAVE}, 14'); A(f's_add_u32 s{sQL}, s{sQL}, {LDS_V + 2*16384}')
    A(f's_cmp_eq_u32 s{sWAVE}, 0'); A(f's_cselect_b32 s{sQL}, {3*16384}, s{sQL}')
    A(f's_mul_i32 s{sT0}, s2, 77824'); A(f's_lshl_b32 s{sT1}, s2, 19')
    A('s_waitcnt lgkmcnt(0)')
    for srd, ptr, off, n in ((SQ, 4, sT0, 77824), (SK, 6, sT1, 524288), (SV, 8, sT1, 524288), (SO, 10, sT0, 77824)):
        A(f's_add_u32 s{srd}, s{ptr}, s{off}'); A(f's_addc_u32 s{srd+1}, s{ptr+1}, 0')
        A(f's_mov_b32 s{srd+2}, {n}'); A(f's_mov_b32 s{srd+3}, 0x20000')
    if cfg.diag:
        A(f's_mov_b32 s{sWS+2}, 0x100000'); A(f's_mov_b32 s{sWS+3}, 0x20000')
    A(f's_cmp_eq_u32 s{sWAVE}, 3'); A('s_cbranch_scc1 L_start_w4')
    H, _ = check(H, fix=True)
    w5 = Wave(cfg, 5, False); w4 = Wave(cfg, 4, True)
    c5 = w5.emit(); c4 = w4.emit()
    F = []; A = lambda t: F.append(I(t))
    A('L_fin:')
    if cfg.diag:
        A('s_waitcnt vmcnt(0)')
        A(f's_memtime s[{sST+10}:{sST+11}]'); A(f's_memrealtime s[{sST+12}:{sST+13}]'); A('s_waitcnt lgkmcnt(0)')
        for i in range(48): A(f'v_mov_b32 v{16+i}, s{sST+i}')
        A(f's_lshl_b32 s{sT0}, s2, 2'); A(f's_add_u32 s{sT0}, s{sT0}, s{sWAVE}'); A(f's_lshl_b32 s{sT0}, s{sT0}, 8')
        if cfg.trace:
            A(f's_cmp_lg_u32 s{sWAVE}, 3'); A('s_cbranch_scc1 L_notr')
            A(f's_lshl_b32 s{sT1}, s2, 9'); A(f's_add_u32 s{sT1}, s{sT1}, 0x80000'); A('v_lshlrev_b32 v4, 2, v1')
            A(f'buffer_store_dword v250, v4, s[{sWS}:{sWS+3}], s{sT1} offen'); A(f'buffer_store_dword v251, v4, s[{sWS}:{sWS+3}], s{sT1} offen offset:256')
            A('L_notr:')
        A(f'v_mov_b32 v4, s{sT0}'); A('s_mov_b64 exec, 1')
        for i in range(12): A(f'buffer_store_dwordx4 v[{16+4*i}:{19+4*i}], v4, s[{sWS}:{sWS+3}], 0 offen offset:{16*i}')
    A('L_end:'); A('s_endpgm')
    hdr = open('cdna_kernels/' + NAME + '.s.ref').read().split('\n') if False else []
    lines = ['; attention forward, one (batch, head) per workgroup; generated by a hand-written scheduler script',
             f'; @launch grid=(256,1,1) block=(256,1,1) lds={LDS_TOTAL}',
             '.amdgcn_target "amdgcn-amd-amdhsa--gfx950"', '.text', f'.globl {NAME}_kernel', '.p2align 8',
             f'.type {NAME}_kernel,@function', f'{NAME}_kernel:']
    for x in H + c5 + c4 + F:
        lines.append(x.text if x.kind == 'label' else '    ' + x.text)
    lines += ['.section .rodata,"a"', '.p2align 6', f'.amdhsa_kernel {NAME}_kernel',
              '  .amdhsa_next_free_vgpr 512', '  .amdhsa_next_free_sgpr 102', '  .amdhsa_accum_offset 256',
              '  .amdhsa_group_segment_fixed_size 0', '  .amdhsa_kernarg_size 48', '  .amdhsa_user_sgpr_count 2',
              '  .amdhsa_user_sgpr_kernarg_segment_ptr 1', '  .amdhsa_system_sgpr_workgroup_id_x 1',
              '  .amdhsa_float_denorm_mode_32 3', '.end_amdhsa_kernel']
    sys.stderr.write(f'over5={w5.over} over4={w4.over} n5={len(c5)} n4={len(c4)}\n')
    return '\n'.join(lines) + '\n'

def mk(**kw):
    c = Cfg()
    for k, v in kw.items():
        assert hasattr(c, k), k
        setattr(c, k, v)
    return c

if __name__ == '__main__':
    out = sys.argv[1]
    kw = eval('dict(' + (sys.argv[2] if len(sys.argv) > 2 else '') + ')')
    open(out, 'w').write(generate(mk(**kw)))
```

```python
import sys, struct
from asmlib import I, R, check, regs

NAME = 'standalone__mha_softmax__near_ridge'
LOG2E = 1.4426950408889634
CSC = LOG2E * (128 ** -0.5)
def fbits(x): return struct.unpack('<I', struct.pack('<f', x))[0]

class Cfg:
    sm5 = ()
    sm4 = (0, 1, 2, 3)
    diag = False
    margin = 12
    qnt = ' nt'
    ont = ''
    thr_exp = 32
    dma_space = 4
    dma_start = 2
    margin_b = 8
    ahead = 3
    trace = False
    pref = 0
    drop = ()
    swap_pv = False
    nodma = False
    nobar = False
    nods = False

SQ, SK, SV, SO = 12, 16, 20, 24
sWAVE, sCNT, sOFF, sMODE, sC, sT0, sT1, sQOFF = 28, 29, 30, 31, 32, 34, 35, 36
sWOFF, sQL, sOFFV = 37, 38, 39
sWS = 40
sST = 48
LDS_V = 65536
LDS_X = 131072
LDS_TOTAL = 163840

vS = 8
vNM = 16
vL = 36
vIDX = 41
vAK = 42
vAV = 46
vP = 54
vO = 96
aQ = 0; aK = 80; aV = 144; aL = 208; aONE = 228

def Oreg(j, dt): return vO + (j * 8 + dt) * 4
def Qreg(j, s): return aQ + (j * 4 + s) * 4
def Kreg(buf, a, s): return aK + buf * 32 + (a * 4 + s) * 4
def Vreg(buf, dt): return aV + buf * 32 + dt * 4

class Wave:
    def __init__(self, cfg, NT, loader):
        self.cfg = cfg; self.NT = NT; self.loader = loader
        self.sm = tuple(cfg.sm4 if NT == 4 else cfg.sm5)
        self.pded = {j: vP + 8 + 8 * i for i, j in enumerate(self.sm)}
        assert vP + 8 + 8 * len(self.sm) <= 94 or len(self.sm) == NT
        if len(self.sm) == NT: self.pded = {j: vP + 8 * i for i, j in enumerate(self.sm)}
        self.vDV = 94
        self.vDK = Oreg(4, 0) if loader else 90
        self.tag = f'w{NT}'

    def Preg(self, u):
        NT = self.NT; j = u % NT; h = (u // NT) % 2
        if j in self.pded: return self.pded[j] + 4 * h
        return vP + 4 * (u % 2)

    def mf_qk(self, u, a, s):
        NT = self.NT; j = u % NT; hh = (u // NT)
        d = R('v', vS + 4 * a, 4)
        c = R('v', vNM + 4 * j, 4) if s == 0 else d
        return I(f'v_mfma_f32_16x16x32_bf16 {d}, {R("a", Kreg(hh % 2, a, s), 4)}, {R("a", Qreg(j, s), 4)}, {c}')
    def mf_pv(self, u, dt):
        NT = self.NT; j = u % NT; hh = (u // NT)
        o = R('v', Oreg(j, dt), 4)
        if self.cfg.swap_pv:
            return I(f'v_mfma_f32_16x16x32_bf16 {o}, {R("v", self.Preg(u), 4)}, {R("a", Vreg(hh % 2, dt), 4)}, {o}')
        return I(f'v_mfma_f32_16x16x32_bf16 {o}, {R("a", Vreg(hh % 2, dt), 4)}, {R("v", self.Preg(u), 4)}, {o}')
    def mf_sum(self, u):
        j = u % self.NT
        return I(f'v_smfmac_f32_16x16x64_bf16 {R("a", aL + 4 * j, 4)}, {R("a", aONE, 4)}, {R("v", self.pded[j], 8)}, v{vIDX}')
    def op_exp(self, r): return I(f'v_exp_f32 v{vS + r}, v{vS + r}')
    def op_add(self, u, r):
        j = u % self.NT
        return I(f'v_add_f32 v{vL + j}, v{vL + j}, v{vS + r}')
    def op_cvt(self, u, r):
        return I(f'v_cvt_pk_bf16_f32 v{self.Preg(u) + r // 2}, v{vS + r - 1}, v{vS + r}')
    def ds_k(self, n, a, s):
        off = ((n // 2) % 4) * 16384 + (n % 2) * 8192 + a * 4096
        return I(f'ds_read_b128 {R("a", Kreg(n % 2, a, s), 4)}, v{vAK + s} offset:{off}')
    def ds_v(self, n, dt, a):
        off = ((n // 2) % 4) * 16384 + (n % 2) * 8192 + a * 4096
        return I(f'ds_read_b64_tr_b16 {R("a", Vreg(n % 2, dt) + 2 * a, 2)}, v{vAV + dt} offset:{off}')
    def dma(self, isv, i):
        srd = SV if isv else SK
        vo = self.vDV + (i & 1) if isv else self.vDK + i
        return I(f'buffer_load_dwordx4 v{vo}, s[{srd}:{srd+3}], s{sOFFV if isv else sOFF} offen offset:{i*1024} nt lds')

    def groups(self, isv, slot):
        so = sOFFV if isv else sOFF
        return [(I(f's_mov_b32 m0, {(LDS_V if isv else 0) + slot * 16384 + g * 4096}'), [self.dma(isv, i) for i in range(4)],
                 I(f's_add_u32 s{so}, s{so}, 4096')) for g in range(4)]

    def build_loop(self):
        cfg = self.cfg; NT = self.NT
        NU = 8 * NT; L = NU * 16
        mf = [None] * L; extra = {}
        sc = [[] for _ in range(L)]; mem = [[] for _ in range(L)]; va = [[] for _ in range(L)]
        load = [0] * L
        for u in range(NU):
            b = 16 * u
            for s in range(4):
                mf[b + s] = self.mf_qk(u, 0, s); mf[b + 8 + s] = self.mf_qk(u, 1, s)
                mf[b + 4 + s] = self.mf_pv((u - 2) % NU, 4 + s); mf[b + 12 + s] = self.mf_pv((u - 1) % NU, s)
            x = (u - 1) % NU
            if (x % NT) in self.sm and (x // NT) % 2 == 1: extra[b + 15] = self.mf_sum(x)
            for r in range(8):
                g = (b + 8 + 2 * r) % L
                va[g].append(self.op_exp(r)); load[g] += 8
                g1 = (g + 1) % L
                if (u % NT) not in self.sm: va[g1].append(self.op_add(u, r)); load[g1] += 4
                if r % 2: va[g1].append(self.op_cvt(u, r)); load[g1] += 4
        bar = {}
        for n in range(1, 8, 2):
            g = n * NT * 16
            sc[g - 1].append(I(f's_waitcnt vmcnt({48 if self.loader else 0})'))
            sc[g].append(I('s_barrier')); bar[n] = g
        self.bar_gaps = set(bar.values())
        if cfg.diag and cfg.trace and self.loader:
            for n in range(1, 8, 2):
                g = bar[n]
                sc[g] += [I('s_memtime s[96:97]'), I('s_memrealtime s[98:99]'), I('s_waitcnt lgkmcnt(0)'),
                          I('s_mov_b32 m0, s100'), I('s_nop 0'), I('v_writelane_b32 v250, s96, m0'), I('v_writelane_b32 v251, s98, m0'), I('s_add_u32 s100, s100, 1')]
        self.pre_dma = []
        for n in (range(1, 8, 2) if self.loader else []):
            p = (n + 1) // 2
            g = bar[n] + cfg.dma_start
            def put(lst, pos, ins):
                lst[pos % L].append(ins)
                if n == 7 and pos < L: self.pre_dma.append(ins)
            def free_sc(pos): return not sc[pos % L] and pos % L not in (L - 3, L - 2, L - 1)
            k = 0
            for m0, dmas, post in self.groups(1, (p + 2) % 4) + self.groups(0, (p + 3) % 4):
                while not free_sc(g): g += 1
                put(sc, g, I('s_waitcnt vmcnt(59)')); g += 1
                while not free_sc(g): g += 1
                put(sc, g, m0); g += 1
                for d in dmas:
                    g = max(g, bar[n] + cfg.dma_start + 2 + int(k * cfg.dma_space)); k += 1
                    while load[g % L] + 4 > 8 or mem[g % L]: g += 1
                    put(mem, g, d); load[g % L] += 4
                    g += 1
                while not free_sc(g): g += 1
                put(sc, g, post); g += 1
            assert g - bar[n] < 2 * NT * 16 - 1, (g - bar[n])
        ops = []
        for n in range(1, 9):
            for a in range(2):
                for s in range(4):
                    e = (n - 1) * NT * 16 + (1 if (n - 1) % 2 == 1 else 0)
                    l = n * NT * 16 + 8 * a + s - cfg.margin
                    if n % 2: l = min(l, n * NT * 16 - 1 - cfg.margin_b)
                    ops.append((l, e, self.ds_k(n, a, s), n))
            for dt in range(8):
                for a in range(2):
                    if dt < 4:
                        e = (n - 1) * NT * 16 + 12 + dt; l = (n * NT + 1) * 16 + 12 + dt - cfg.margin
                    else:
                        e = ((n - 1) * NT + 1) * 16 + dt; l = (n * NT + 2) * 16 + dt - cfg.margin
                    ops.append((l, e, self.ds_v(n, dt, a), n))
        ops.sort(key=lambda x: (x[0], x[1]))
        self.pre_ds = []
        over = 0
        cursor = 0
        for l, e, ins, n in ops:
            pos = None
            for g in range(e, l + 1):
                if load[g % L] + 4 <= 8: pos = g; break
            if pos is None:
                pos = min(range(e, l + 1), key=lambda g: (load[g % L], 0 if mem[g % L] else 1, -g)); over += 1
            mem[pos % L].append(ins); load[pos % L] += 4
            if n == 8 and pos < L: self.pre_ds.append(ins)
        self.over = over
        sc[L - 3].append(I(f's_sub_u32 s{sCNT}, s{sCNT}, 1'))
        sc[L - 2].append(I(f's_cmp_lg_u32 s{sCNT}, 0'))
        gaps = []
        for g in range(L):
            gaps.append([mf[g], sc[g], mem[g], va[g]])
            if g in extra: gaps.append([extra[g], [], [], []])
        self.insert_waits(gaps)
        body = []
        for m, s, me, v in gaps: body += [m] + s + me + v
        if cfg.nodma: body = [x for x in body if x.kind != 'dma']
        if cfg.nobar: body = [x for x in body if x.text != 's_barrier']
        if cfg.nods: body = [x for x in body if x.kind != 'ds']
        for d in cfg.drop: body = [x if not x.text.startswith(d) else I('s_nop 0') for x in body]
        return body

    def insert_waits(self, gaps):
        n = len(gaps)
        outst = []
        for rnd in range(2):
            for gi in range(n):
                m, s, me, v = gaps[gi]
                nxt = gaps[(gi + 1) % n][0]
                rd = set(nxt.rd)
                if any(x.text == 's_barrier' for x in gaps[(gi + 1) % n][1]):
                    rd |= {f'a{r}' for r in range(aK, aK + 64)}
                k = max([i for i, (_, w) in enumerate(outst) if w & rd], default=-1)
                assert not any(x.wr & rd for x in me), 'load right before use'
                have = [x for x in s if x.text.startswith('s_waitcnt lgkmcnt')]
                t = rnd * n + gi
                if k >= 0:
                    req = len(outst) - 1 - k
                    recent = sum(1 for (g0, _) in outst if t - g0 <= 10)
                    N = min(req, recent, 15)
                    if have:
                        old = int(have[0].text.split('(')[1].rstrip(')'))
                        N = min(N, old); s.remove(have[0])
                    s.insert(0, I(f's_waitcnt lgkmcnt({N})'))
                    outst = outst[len(outst) - N:] if N else []
                elif have:
                    N = int(have[0].text.split('(')[1].rstrip(')'))
                    if len(outst) > N: outst = outst[len(outst) - N:] if N else []
                for x in me:
                    if x.kind == 'ds': outst.append((t, x.wr))

    def drain(self):
        NT = self.NT; NU = 8 * NT; U = NU - 1
        o = [I('s_waitcnt lgkmcnt(0)')]
        pv2 = [self.mf_pv(U - 1, 4 + s) for s in range(4)]
        for i, r in enumerate(range(4, 8)):
            o.append(self.op_exp(r)); o.append(pv2[i])
            if (U % NT) not in self.sm: o.append(self.op_add(U, r))
            if r % 2: o.append(self.op_cvt(U, r))
        for dt in range(8): o.append(self.mf_pv(U, dt))
        if (U % NT) in self.sm: o.append(self.mf_sum(U))
        return o

    def stamp(self, k):
        if not self.cfg.diag: return []
        return [I(f's_memtime s[{sST + 2*k}:{sST + 2*k + 1}]')]

    def xmax(self, x, t, op='v_max_f32'):
        o = []
        for sw in ('v_permlane16_swap_b32', 'v_permlane32_swap_b32'):
            o += [I(f'v_mov_b32 v{t}, v{x}'), I(f'{sw} v{x}, v{t}'), I(f'{op} v{x}, v{x}, v{t}')]
        return o

    def late_setup(self):
        o = []; A = lambda t: o.append(I(t))
        for s in range(4):
            A(f'v_add_u32 v4, {4*s}, v2'); A('v_xor_b32 v4, v4, v3'); A('v_lshlrev_b32 v4, 4, v4'); A(f'v_lshl_add_u32 v{vAK+s}, v3, 8, v4')
        A(f'v_lshrrev_b32 v{vS}, 2, v1')
        A(f'v_and_b32 v{vS+1}, 7, v{vS}'); A(f'v_lshlrev_b32 v{vS+1}, 1, v{vS+1}')
        A(f'v_bfe_u32 v{vS+2}, v1, 1, 1')
        A(f'v_and_b32 v{vS+3}, 1, v1'); A(f'v_lshlrev_b32 v{vS+3}, 3, v{vS+3}')
        A(f'v_lshl_add_u32 v{vS+3}, v{vS}, 8, v{vS+3}'); A(f'v_add_u32 v{vS+3}, {LDS_V}, v{vS+3}')
        for dt in range(8):
            A(f'v_add_u32 v4, {2*dt}, v{vS+2}'); A(f'v_xor_b32 v4, v4, v{vS+1}'); A(f'v_lshl_add_u32 v{vAV+dt}, v4, 4, v{vS+3}')
        A('v_and_b32 v4, 1, v1'); A(f'v_mov_b32 v{vS}, 0xaaaaaaaa'); A(f'v_mul_lo_u32 v4, v4, v{vS}'); A(f'v_add_u32 v{vIDX}, 0x44444444, v4')
        A('v_mov_b32 v4, 0x3f803f80')
        for r in range(4): A(f'v_accvgpr_write_b32 a{aONE + r}, v4')
        return o

    def emit(self):
        cfg = self.cfg; NT = self.NT; tg = self.tag
        body = self.build_loop()
        pro = []; A = lambda t: pro.append(I(t))
        A(f'L_start_{tg}:')
        pro += self.stamp(7)
        for i in range(4):
            A(f'v_add_u32 v4, {4*i}, v2'); A('v_xor_b32 v4, v4, v3'); A('v_lshlrev_b32 v4, 4, v4')
            A(f'v_lshl_add_u32 v{self.vDK + i}, v2, 8, v4')
        for i in range(2):
            A(f'v_add_u32 v4, {4*i}, v2'); A('v_lshlrev_b32 v4, 1, v4'); A('v_xor_b32 v4, v4, v3'); A('v_lshlrev_b32 v4, 4, v4')
            A(f'v_lshl_add_u32 v{self.vDV + i}, v2, 8, v4')
        def r_kv(isv, t):
            so = sOFFV if isv else sOFF
            return [I(f's_add_u32 s{so}, s{sWOFF}, {t * 16384}'), I(f's_add_u32 m0, s{sWOFF}, {(LDS_V if isv else 0) + t * 16384}')] + \
                   [self.dma(isv, i) for i in range(4)]
        def r_q(j):
            o = [I(f's_add_u32 s{sT0}, s{sQOFF}, {j*4096}'),
                 I(f's_add_u32 m0, s{sQL}, {j*4096}') if j < 4 else I(f's_add_u32 m0, s{sWOFF}, {LDS_V + 2*16384}')]
            return o + [I(f'buffer_load_dwordx4 v{self.vDK + i}, s[{SQ}:{SQ+3}], s{sT0} offen offset:{1024*i}{cfg.qnt} lds') for i in range(4)]
        def k2():
            o = [I(f's_mov_b32 s{sOFF}, 32768'), I(f's_mov_b32 s{sOFFV}, 32768')]
            for m0, dmas, post in self.groups(0, 2): o += [m0] + dmas + [post]
            return o
        def init():
            o = self.late_setup()
            o += [I(f'v_mov_b32 v{vO + r}, 0') for r in range(NT * 32)]
            o += [I(f'v_mov_b32 v{vL + j}, 0') for j in range(NT)]
            o += [I(f'v_accvgpr_write_b32 a{aL + 4*j + r}, 0') for j in self.sm for r in range(4)]
            o += [I(f'v_accvgpr_write_b32 a{Vreg(1, 0) + r}, 0') for r in range(32)]
            o.append(I(f's_mov_b32 s{sCNT}, 8'))
            return o
        kds = [x for x in self.pre_ds if 'b128' in x.text]
        vds = [x for x in self.pre_ds if 'b128' not in x.text]
        assert len(kds) == 8
        A(f's_cmp_lg_u32 s{sMODE}, 0'); A(f's_cbranch_scc1 L_re_{tg}')
        rounds = [r_kv(0, 0)] + [r_q(j) for j in range(NT)] + [r_kv(1, 0), r_kv(0, 1), r_kv(1, 1)]
        issued = [0]
        def issue(upto):
            while issued[0] < min(upto, len(rounds)):
                pro.extend(rounds[issued[0]]); issued[0] += 1
        def wait_round(k):
            A(f's_waitcnt vmcnt({4 * (issued[0] - 1 - k)})')
        issue(cfg.ahead)
        pro += self.stamp(8)
        pro += init()
        for s_ in range(4):
            A(f'v_add_u32 v{vS + s_}, s{sQL}, v{vAK + s_}')
        A(f's_add_u32 s{sT1}, s{sWOFF}, {LDS_V + 2*16384}')
        for s_ in range(4):
            A(f'v_add_u32 v{vS + 4 + s_}, s{sT1}, v{vAK + s_}')
        pro += self.stamp(9)
        wait_round(0)
        pro += self.stamp(10)
        A('s_barrier')
        pro += kds
        issue(cfg.ahead + 1)
        pro += self.stamp(11)
        QT = vP; TT = vP + 16
        for j in range(NT):
            wait_round(1 + j)
            pro += self.stamp(12 + j)
            for s_ in range(4):
                if j < 4: A(f'ds_read_b128 {R("v", QT + 4*s_, 4)}, v{vS + s_} offset:{j*4096}')
                else: A(f'ds_read_b128 {R("v", QT + 4*s_, 4)}, v{vS + 4 + s_}')
            issue(cfg.ahead + 2 + j)
            for s_ in range(0, 4, 2):
                A(f's_waitcnt lgkmcnt({2 - s_})')
                rr = range(4 * s_, 4 * s_ + 8)
                for r in rr:
                    t = TT + 2 * (r % 8)
                    A(f'v_lshlrev_b32 v{t}, 16, v{QT + r}'); A(f'v_and_b32 v{t+1}, 0xffff0000, v{QT + r}')
                for r in rr:
                    t = TT + 2 * (r % 8)
                    A(f'v_pk_mul_f32 v[{t}:{t+1}], v[{t}:{t+1}], s[{sC}:{sC+1}]')
                for r in rr:
                    t = TT + 2 * (r % 8)
                    A(f'v_cvt_pk_bf16_f32 v{t}, v{t}, v{t+1}')
                for r in rr:
                    t = TT + 2 * (r % 8)
                    A(f'v_accvgpr_write_b32 a{Qreg(j, 0) + r}, v{t}')
            nm = vNM + 4 * j
            for s_ in range(4):
                A(f'v_mfma_f32_16x16x32_bf16 {R("v", nm, 4)}, {R("a", Kreg(0, 0, s_), 4)}, {R("a", Qreg(j, s_), 4)}, {"0" if s_ == 0 else R("v", nm, 4)}')
        issue(99)
        for r in range(vP, 90): A(f'v_mov_b32 v{r}, 0')
        steps = []
        for j in range(NT):
            nm = vNM + 4 * j
            st = [I(f'v_max3_f32 v{nm}, v{nm}, v{nm+1}, v{nm+2}'), I(f'v_max_f32 v{nm}, v{nm}, v{nm+3}')] + self.xmax(nm, nm + 1)
            st += [I(f'v_sub_f32 v{nm + r}, 0, v{nm}') for r in (1, 2, 3, 0)]
            steps.append(st)
        for k in range(len(steps[0])):
            for st in steps: pro.append(st[k])
        if self.loader: pro += k2()
        pro += self.stamp(17)
        A(f's_waitcnt vmcnt({8 + (16 if self.loader else 0)})')
        pro += self.stamp(18)
        A('s_barrier')
        pro += self.stamp(19)
        A(f's_branch L_go_{tg}')
        A(f'L_re_{tg}:')
        pro += r_kv(0, 0) + r_kv(1, 0) + r_kv(0, 1) + r_kv(1, 1)
        if self.loader: pro += k2()
        pro += init()
        for r in range(vP, 90): A(f'v_mov_b32 v{r}, 0')
        A(f's_waitcnt vmcnt({8 + (16 if self.loader else 0)})')
        A('s_barrier')
        pro += kds
        A(f'L_go_{tg}:')
        if len(self.sm) == 5:
            for r in range(90, 94): A(f'v_mov_b32 v{r}, 0')
        pro += vds
        pro += self.pre_dma
        if cfg.drop:
            for a in range(2):
                for s_ in range(4): pro.append(self.ds_k(1, a, s_))
                for dt in range(8): pro.append(self.ds_v(0, dt, a)); pro.append(self.ds_v(1, dt, a))
            A('s_waitcnt lgkmcnt(0)')
            for r in range(vP, 94):
                A(f'v_accvgpr_read_b32 v{r}, a{aK + r - vP}'); A(f'v_and_b32 v{r}, 0x7fff7fff, v{r}')
        for r in range(4, 8): A(f'v_mov_b32 v{vS + r}, 0xf149f2ca')
        A('s_waitcnt lgkmcnt(0)')
        pro += self.stamp(1)
        pro, _ = check(pro, fix=True)
        _, prob = check(pro[-12:] + body + body)
        assert not prob, prob[:5]
        tail = self.stamp(2) + self.drain()
        tail += self.epilogue()
        full, _ = check(body[-24:] + tail, fix=True, start=24)
        tail = full[24:]
        out = pro + [I('.p2align 6'), I(f'L_loop_{tg}:')] + body + [I(f's_cbranch_scc1 L_loop_{tg}')] + tail
        return out

    def epilogue(self):
        cfg = self.cfg; NT = self.NT; tg = self.tag
        o = []; A = lambda t: o.append(I(t))
        A(f's_mov_b64 s[{sT0}:{sT0+1}], 0')
        A(f's_mov_b32 s{sCNT}, {(127 + cfg.thr_exp) << 23}')
        T = vP
        W = vAV; RD = vAV + 4
        A(f's_lshl_b32 s{sOFF}, s{sWAVE}, 13'); A(f's_add_u32 s{sOFF}, s{sOFF}, {LDS_X}')
        A(f'v_mov_b32 v7, s{sOFF}')
        A('v_and_b32 v4, 1, v2'); A('v_lshlrev_b32 v4, 1, v4'); A(f'v_lshrrev_b32 v{T}, 1, v2'); A(f'v_add_u32 v4, v4, v{T}')
        A(f'v_lshl_add_u32 v{T}, v3, 8, v7'); A(f'v_lshl_add_u32 v{T+1}, v2, 8, v7')
        for e in range(4):
            A(f'v_add_u32 v{T+2}, {4*e}, v4'); A(f'v_xor_b32 v{T+2}, v{T+2}, v3'); A(f'v_lshl_add_u32 v{W+e}, v{T+2}, 4, v{T}')
            A(f'v_add_u32 v{T+2}, {4*e}, v2'); A(f'v_xor_b32 v{T+2}, v{T+2}, v3'); A(f'v_lshl_add_u32 v{RD+e}, v{T+2}, 4, v{T+1}')
        A('v_lshlrev_b32 v6, 4, v1')
        def flush(j):
            A(f's_add_u32 s{sOFF}, s{sQOFF}, {j*4096}')
            for e in range(4):
                A(f's_waitcnt lgkmcnt({3 - e})')
                A(f'buffer_store_dwordx4 {R("v", T + 12 + 4*e, 4)}, v6, s[{SO}:{SO+3}], s{sOFF} offen offset:{1024*e}{cfg.ont}')
        for j in range(NT):
            l = vL + j
            if j in self.sm:
                A(f'v_accvgpr_read_b32 v{l}, a{aL + 4*j}'); A(f'v_accvgpr_read_b32 v{T}, a{aL + 4*j + 1}')
                A(f'v_add_f32 v{l}, v{l}, v{T}')
            else:
                o.extend(self.xmax(l, T, 'v_add_f32'))
            A(f'v_cmp_nlt_f32 vcc, v{l}, s{sCNT}')
            A(f'v_rcp_f32 v{T+2}, v{l}')
            A(f's_or_b64 s[{sT0}:{sT0+1}], s[{sT0}:{sT0+1}], vcc')
            b0 = Oreg(j, 0)
            for r in range(0, 32, 2):
                A(f'v_pk_mul_f32 v[{b0+r}:{b0+r+1}], v[{b0+r}:{b0+r+1}], v[{T+2}:{T+3}] op_sel_hi:[1,0]')
            if j: flush(j - 1)
            for r in range(16):
                A(f'v_cvt_pk_bf16_f32 v{b0+r}, v{b0+2*r}, v{b0+2*r+1}')
            for e in range(4):
                d = b0 + 4 * e
                A(f'v_permlane16_swap_b32 v{d}, v{d+2}'); A(f'v_permlane16_swap_b32 v{d+1}, v{d+3}')
            for e in range(4):
                A(f'ds_write_b128 v{W+e}, {R("v", b0 + 4*e, 4)} offset:{(j % 2) * 4096}')
            for e in range(4):
                A(f'ds_read_b128 {R("v", T + 12 + 4*e, 4)}, v{RD+e} offset:{(j % 2) * 4096 + 1024*e}')
        flush(NT - 1)
        o += self.stamp(3)
        if cfg.drop or cfg.nodma or cfg.nods or cfg.swap_pv: A('s_branch L_fin')
        A(f's_cmp_lg_u32 s{sMODE}, 0'); A('s_cbranch_scc1 L_fin')
        A(f's_cmp_lg_u64 s[{sT0}:{sT0+1}], 0'); A(f's_cselect_b32 s{sT0}, 1, 0')
        A(f'v_mov_b32 v4, s{sT0}'); A(f'ds_write_b32 v7, v4')
        A('s_waitcnt lgkmcnt(0)'); A('s_barrier')
        A(f'v_and_b32 v4, 3, v1'); A(f'v_lshlrev_b32 v4, 13, v4'); A(f'v_add_u32 v4, {LDS_X}, v4')
        A('ds_read_b32 v4, v4'); A('s_waitcnt lgkmcnt(0)')
        A('v_cmp_ne_u32 vcc, 0, v4'); A('s_nop 3')
        A('s_cmp_eq_u64 vcc, 0'); A('s_cbranch_scc1 L_fin')
        A('s_waitcnt vmcnt(0)')
        A(f's_mov_b32 s{sMODE}, 1'); A(f's_mov_b32 s{sOFF}, 0')
        for j in range(NT): A(f'v_mov_b32 v{vL + j}, 0xff800000')
        A(f'L_slow_{tg}:')
        for s in range(4):
            A(f'buffer_load_dwordx4 {R("a", Kreg(0, 0, s), 4)}, v5, s[{SK}:{SK+3}], s{sOFF} offen offset:{64*s}')
        A('s_waitcnt vmcnt(0)')
        for j in range(NT):
            nm = vNM + 4 * j
            for s in range(4):
                A(f'v_mfma_f32_16x16x32_bf16 {R("v", nm, 4)}, {R("a", Kreg(0, 0, s), 4)}, {R("a", Qreg(j, s), 4)}, {"0" if s == 0 else R("v", nm, 4)}')
        A('s_nop 7')
        for j in range(NT):
            nm = vNM + 4 * j
            A(f'v_max3_f32 v{vL+j}, v{vL+j}, v{nm}, v{nm+1}'); A(f'v_max3_f32 v{vL+j}, v{vL+j}, v{nm+2}, v{nm+3}')
        A(f's_add_u32 s{sOFF}, s{sOFF}, 4096'); A(f's_cmp_lt_u32 s{sOFF}, 524288'); A('s_nop 3'); A(f's_cbranch_scc1 L_slow_{tg}')
        for j in range(NT):
            nm = vNM + 4 * j
            o.extend(self.xmax(vL + j, nm))
            for r in range(4): A(f'v_sub_f32 v{nm + r}, 0, v{vL + j}')
        A('s_barrier')
        A(f's_branch L_start_{tg}')
        return o

def generate(cfg):
    H = []; A = lambda t: H.append(I(t))
    A('s_cmp_ge_u32 s2, 256'); A('s_cbranch_scc1 L_end')
    A('s_load_dwordx4 s[4:7], s[0:1], 0'); A('s_load_dwordx4 s[8:11], s[0:1], 16')
    if cfg.diag:
        A(f's_load_dwordx2 s[{sWS}:{sWS+1}], s[0:1], 40'); A(f's_memtime s[{sST}:{sST+1}]'); A(f's_memrealtime s[{sST+8}:{sST+9}]')
    A('v_lshrrev_b32 v4, 6, v0'); A('v_and_b32 v1, 63, v0'); A(f'v_readfirstlane_b32 s{sWAVE}, v4')
    if cfg.pref:
        A('s_getpc_b64 s[44:45]')
        A('L_pc:')
        if cfg.pref == 1:
            A('s_lshr_b32 s46, s2, 3'); A('s_and_b32 s46, s46, 7'); A('s_lshl_b32 s46, s46, 13')
            A('v_lshlrev_b32 v8, 7, v1'); A('v_add_u32 v8, s46, v8')
        else:
            A('s_lshr_b32 s46, s2, 3'); A('s_and_b32 s46, s46, 1'); A('s_lshl_b32 s46, s46, 15')
            A('v_lshlrev_b32 v8, 7, v0'); A('v_add_u32 v8, s46, v8')
        A('v_min_u32 v8, L_code_end-L_pc-4, v8')
        A('v_mov_b32 v9, s45'); A('v_add_co_u32 v8, vcc, s44, v8'); A('s_nop 1'); A('v_addc_co_u32 v9, vcc, 0, v9, vcc')
        A('global_load_dword v0, v[8:9], off')
    A('v_lshrrev_b32 v2, 4, v1'); A('v_and_b32 v3, 15, v1')
    A('v_lshlrev_b32 v5, 8, v3'); A('v_lshl_add_u32 v5, v2, 4, v5')
    A(f's_mov_b32 s{sC}, {fbits(CSC)}'); A(f's_mov_b32 s{sC+1}, {fbits(CSC)}')
    A(f's_mov_b32 s{sMODE}, 0')
    if cfg.diag: A('s_mov_b32 s100, 0')
    A(f's_mul_i32 s{sQOFF}, s{sWAVE}, {80*256}')
    A(f's_lshl_b32 s{sWOFF}, s{sWAVE}, 12')
    A(f's_lshl_b32 s{sQL}, s{sWAVE}, 14'); A(f's_add_u32 s{sQL}, s{sQL}, {LDS_V + 2*16384}')
    A(f's_cmp_eq_u32 s{sWAVE}, 0'); A(f's_cselect_b32 s{sQL}, {3*16384}, s{sQL}')
    A(f's_mul_i32 s{sT0}, s2, 77824'); A(f's_lshl_b32 s{sT1}, s2, 19')
    A('s_waitcnt lgkmcnt(0)')
    for srd, ptr, off, n in ((SQ, 4, sT0, 77824), (SK, 6, sT1, 524288), (SV, 8, sT1, 524288), (SO, 10, sT0, 77824)):
        A(f's_add_u32 s{srd}, s{ptr}, s{off}'); A(f's_addc_u32 s{srd+1}, s{ptr+1}, 0')
        A(f's_mov_b32 s{srd+2}, {n}'); A(f's_mov_b32 s{srd+3}, 0x20000')
    if cfg.diag:
        A(f's_mov_b32 s{sWS+2}, 0x100000'); A(f's_mov_b32 s{sWS+3}, 0x20000')
    A(f's_cmp_eq_u32 s{sWAVE}, 3'); A('s_cbranch_scc1 L_start_w4')
    H, _ = check(H, fix=True)
    w5 = Wave(cfg, 5, False); w4 = Wave(cfg, 4, True)
    c5 = w5.emit(); c4 = w4.emit()
    F = []; A = lambda t: F.append(I(t))
    A('L_fin:')
    if cfg.diag:
        A('s_waitcnt vmcnt(0)')
        A(f's_memtime s[{sST+10}:{sST+11}]'); A(f's_memrealtime s[{sST+12}:{sST+13}]'); A('s_waitcnt lgkmcnt(0)')
        for i in range(48): A(f'v_mov_b32 v{16+i}, s{sST+i}')
        A(f's_lshl_b32 s{sT0}, s2, 2'); A(f's_add_u32 s{sT0}, s{sT0}, s{sWAVE}'); A(f's_lshl_b32 s{sT0}, s{sT0}, 8')
        if cfg.trace:
            A(f's_cmp_lg_u32 s{sWAVE}, 3'); A('s_cbranch_scc1 L_notr')
            A(f's_lshl_b32 s{sT1}, s2, 9'); A(f's_add_u32 s{sT1}, s{sT1}, 0x80000'); A('v_lshlrev_b32 v4, 2, v1')
            A(f'buffer_store_dword v250, v4, s[{sWS}:{sWS+3}], s{sT1} offen'); A(f'buffer_store_dword v251, v4, s[{sWS}:{sWS+3}], s{sT1} offen offset:256')
            A('L_notr:')
        A(f'v_mov_b32 v4, s{sT0}'); A('s_mov_b64 exec, 1')
        for i in range(12): A(f'buffer_store_dwordx4 v[{16+4*i}:{19+4*i}], v4, s[{sWS}:{sWS+3}], 0 offen offset:{16*i}')
    A('L_end:'); A('s_endpgm'); A('L_code_end:')
    hdr = open('cdna_kernels/' + NAME + '.s.ref').read().split('\n') if False else []
    lines = ['; attention forward, one (batch, head) per workgroup; generated by a hand-written scheduler script',
             f'; @launch grid=(256,1,1) block=(256,1,1) lds={LDS_TOTAL}',
             '.amdgcn_target "amdgcn-amd-amdhsa--gfx950"', '.text', f'.globl {NAME}_kernel', '.p2align 8',
             f'.type {NAME}_kernel,@function', f'{NAME}_kernel:']
    for x in H + c5 + c4 + F:
        lines.append(x.text if x.kind == 'label' else '    ' + x.text)
    lines += ['.section .rodata,"a"', '.p2align 6', f'.amdhsa_kernel {NAME}_kernel',
              '  .amdhsa_next_free_vgpr 512', '  .amdhsa_next_free_sgpr 102', '  .amdhsa_accum_offset 256',
              '  .amdhsa_group_segment_fixed_size 0', '  .amdhsa_kernarg_size 48', '  .amdhsa_user_sgpr_count 2',
              '  .amdhsa_user_sgpr_kernarg_segment_ptr 1', '  .amdhsa_system_sgpr_workgroup_id_x 1',
              '  .amdhsa_float_denorm_mode_32 3', '.end_amdhsa_kernel']
    sys.stderr.write(f'over5={w5.over} over4={w4.over} n5={len(c5)} n4={len(c4)}\n')
    return '\n'.join(lines) + '\n'

def mk(**kw):
    c = Cfg()
    for k, v in kw.items():
        assert hasattr(c, k), k
        setattr(c, k, v)
    return c

if __name__ == '__main__':
    out = sys.argv[1]
    kw = eval('dict(' + (sys.argv[2] if len(sys.argv) > 2 else '') + ')')
    open(out, 'w').write(generate(mk(**kw)))
```

```python
import sys, struct
from asmlib import I, R, check, regs

NAME = 'standalone__mha_softmax__near_ridge'
LOG2E = 1.4426950408889634
CSC = LOG2E * (128 ** -0.5)
def fbits(x): return struct.unpack('<I', struct.pack('<f', x))[0]

class Cfg:
    sm5 = ()
    sm4 = (0, 1, 2, 3)
    diag = False
    margin = 12
    qnt = ' nt'
    ont = ''
    thr_exp = 32
    dma_space = 4
    dma_start = 2
    margin_b = 8
    ahead = 3
    trace = False
    xorder = ''
    xperm = False
    la = 20
    fill = 0
    warm = ()
    pref = 0
    drop = ()
    swap_pv = False
    nodma = False
    nobar = False
    nods = False

SQ, SK, SV, SO = 12, 16, 20, 24
sWAVE, sCNT, sOFF, sMODE, sC, sT0, sT1, sQOFF = 28, 29, 30, 31, 32, 34, 35, 36
sWOFF, sQL, sOFFV = 37, 38, 39
sWS = 40
sST = 48
LDS_V = 65536
LDS_X = 131072
LDS_TOTAL = 163840

vS = 8
vNM = 16
vL = 36
vIDX = 41
vAK = 42
vAV = 46
vP = 54
vO = 96
aQ = 0; aK = 80; aV = 144; aL = 208; aONE = 228

def Oreg(j, dt): return vO + (j * 8 + dt) * 4
def Qreg(j, s): return aQ + (j * 4 + s) * 4
def Kreg(buf, a, s): return aK + buf * 32 + (a * 4 + s) * 4
def Vreg(buf, dt): return aV + buf * 32 + dt * 4

class Wave:
    def __init__(self, cfg, NT, loader):
        self.cfg = cfg; self.NT = NT; self.loader = loader
        self.sm = tuple(cfg.sm4 if NT == 4 else cfg.sm5)
        self.pded = {j: vP + 8 + 8 * i for i, j in enumerate(self.sm)}
        assert vP + 8 + 8 * len(self.sm) <= 94 or len(self.sm) == NT
        if len(self.sm) == NT: self.pded = {j: vP + 8 * i for i, j in enumerate(self.sm)}
        self.vDV = 94
        self.vDK = Oreg(4, 0) if loader else 90
        self.tag = f'w{NT}'

    def Preg(self, u):
        NT = self.NT; j = u % NT; h = (u // NT) % 2
        if j in self.pded: return self.pded[j] + 4 * h
        return vP + 4 * (u % 2)

    def mf_qk(self, u, a, s):
        NT = self.NT; j = u % NT; hh = (u // NT)
        d = R('v', vS + 4 * a, 4)
        c = R('v', vNM + 4 * j, 4) if s == 0 else d
        return I(f'v_mfma_f32_16x16x32_bf16 {d}, {R("a", Kreg(hh % 2, a, s), 4)}, {R("a", Qreg(j, s), 4)}, {c}')
    def mf_pv(self, u, dt):
        NT = self.NT; j = u % NT; hh = (u // NT)
        o = R('v', Oreg(j, dt), 4)
        if self.cfg.swap_pv:
            return I(f'v_mfma_f32_16x16x32_bf16 {o}, {R("v", self.Preg(u), 4)}, {R("a", Vreg(hh % 2, dt), 4)}, {o}')
        return I(f'v_mfma_f32_16x16x32_bf16 {o}, {R("a", Vreg(hh % 2, dt), 4)}, {R("v", self.Preg(u), 4)}, {o}')
    def mf_sum(self, u):
        j = u % self.NT
        return I(f'v_smfmac_f32_16x16x64_bf16 {R("a", aL + 4 * j, 4)}, {R("a", aONE, 4)}, {R("v", self.pded[j], 8)}, v{vIDX}')
    def op_exp(self, r): return I(f'v_exp_f32 v{vS + r}, v{vS + r}')
    def op_add(self, u, r):
        j = u % self.NT
        return I(f'v_add_f32 v{vL + j}, v{vL + j}, v{vS + r}')
    def op_cvt(self, u, r):
        if self.cfg.xperm: return I(f'v_perm_b32 v{self.Preg(u) + r // 2}, v{vS + r}, v{vS + r - 1}, s101')
        return I(f'v_cvt_pk_bf16_f32 v{self.Preg(u) + r // 2}, v{vS + r - 1}, v{vS + r}')
    def ds_k(self, n, a, s):
        off = ((n // 2) % 4) * 16384 + (n % 2) * 8192 + a * 4096
        return I(f'ds_read_b128 {R("a", Kreg(n % 2, a, s), 4)}, v{vAK + s} offset:{off}')
    def ds_v(self, n, dt, a):
        off = ((n // 2) % 4) * 16384 + (n % 2) * 8192 + a * 4096
        return I(f'ds_read_b64_tr_b16 {R("a", Vreg(n % 2, dt) + 2 * a, 2)}, v{vAV + dt} offset:{off}')
    def dma(self, isv, i):
        srd = SV if isv else SK
        vo = self.vDV + (i & 1) if isv else self.vDK + i
        return I(f'buffer_load_dwordx4 v{vo}, s[{srd}:{srd+3}], s{sOFFV if isv else sOFF} offen offset:{i*1024} nt lds')

    def groups(self, isv, slot):
        so = sOFFV if isv else sOFF
        return [(I(f's_mov_b32 m0, {(LDS_V if isv else 0) + slot * 16384 + g * 4096}'), [self.dma(isv, i) for i in range(4)],
                 I(f's_add_u32 s{so}, s{so}, 4096')) for g in range(4)]

    def group(self, k):
        return self.groups((k % 8) // 4, (k // 8) % 4)[k % 4]

    def build_loop(self):
        cfg = self.cfg; NT = self.NT
        NU = 8 * NT; L = NU * 16; E = 2 * NT * 16
        mf = [None] * L; extra = {}
        sc = [[] for _ in range(L)]; mem = [[] for _ in range(L)]; va = [[] for _ in range(L)]
        load = [0] * L
        for u in range(NU):
            b = 16 * u
            for s in range(4):
                mf[b + s] = self.mf_qk(u, 0, s); mf[b + 8 + s] = self.mf_qk(u, 1, s)
                mf[b + 4 + s] = self.mf_pv((u - 2) % NU, 4 + s); mf[b + 12 + s] = self.mf_pv((u - 1) % NU, s)
            if cfg.xorder:
                q0 = [self.mf_qk(u, 0, s) for s in range(4)]; q1 = [self.mf_qk(u, 1, s) for s in range(4)]
                pv = [self.mf_pv((u - 2) % NU, d) for d in range(8)]
                if cfg.xorder == 'B': seq = q0 + q1 + pv
                if cfg.xorder == 'C': seq = [m for pr in zip(q0, q1) for m in pr] + pv
                if cfg.xorder == 'D': seq = [m for pr in zip(q0 + q1, pv) for m in pr]
                if cfg.xorder == 'E': seq = q0 + pv[:4] + q1 + pv[4:]
                mf[b:b + 16] = seq
            x = (u - 1) % NU
            if (x % NT) in self.sm and (x // NT) % 2 == 1: extra[b + 15] = self.mf_sum(x)
            for r in range(8):
                g = (b + 8 + 2 * r) % L
                va[g].append(self.op_exp(r)); load[g] += 8
                g1 = (g + 1) % L
                if (u % NT) not in self.sm: va[g1].append(self.op_add(u, r)); load[g1] += 4
                if r % 2: va[g1].append(self.op_cvt(u, r)); load[g1] += 4
        bar = {}
        for n in range(1, 8, 2):
            g = n * NT * 16
            sc[g - 1].append(I(f's_waitcnt vmcnt({4 * (cfg.la - 8) if self.loader else 0})'))
            sc[g].append(I('s_barrier')); bar[n] = g
        self.bar_gaps = set(bar.values())
        if cfg.diag and cfg.trace and self.loader:
            for n in range(1, 8, 2):
                g = bar[n]
                sc[g] += [I('s_memtime s[96:97]'), I('s_memrealtime s[98:99]'), I('s_waitcnt lgkmcnt(0)'),
                          I('s_mov_b32 m0, s100'), I('s_nop 0'), I('v_writelane_b32 v250, s96, m0'), I('v_writelane_b32 v251, s98, m0'), I('s_add_u32 s100, s100, 1')]
        self.pre_dma = []
        for n in (range(1, 8, 2) if self.loader else []):
            p = (n + 1) // 2
            g = bar[n] + cfg.dma_start
            def put(lst, pos, ins):
                lst[pos % L].append(ins)
                if n == 1 and pos < E: self.pre_dma.append(ins)
            def free_sc(pos): return not sc[pos % L] and pos % L not in (L - 3, L - 2, L - 1)
            k = 0
            for m0, dmas, post in [self.group(k) for k in range(8 * p + cfg.la, 8 * p + cfg.la + 8)]:
                while not free_sc(g): g += 1
                put(sc, g, I('s_waitcnt vmcnt(59)')); g += 1
                while not free_sc(g): g += 1
                put(sc, g, m0); g += 1
                for d in dmas:
                    g = max(g, bar[n] + cfg.dma_start + 2 + int(k * cfg.dma_space)); k += 1
                    while load[g % L] + 4 > 8 or mem[g % L]: g += 1
                    put(mem, g, d); load[g % L] += 4
                    g += 1
                while not free_sc(g): g += 1
                put(sc, g, post); g += 1
            assert g - bar[n] < 2 * NT * 16 - 1, (g - bar[n])
        ops = []
        for n in range(1, 9):
            for a in range(2):
                for s in range(4):
                    e = (n - 1) * NT * 16 + (1 if (n - 1) % 2 == 1 else 0)
                    l = n * NT * 16 + 8 * a + s - cfg.margin
                    if n % 2: l = min(l, n * NT * 16 - 1 - cfg.margin_b)
                    ops.append((l, e, self.ds_k(n, a, s), n))
            for dt in range(8):
                for a in range(2):
                    if dt < 4:
                        e = (n - 1) * NT * 16 + 12 + dt; l = (n * NT + 1) * 16 + 12 + dt - cfg.margin
                    else:
                        e = ((n - 1) * NT + 1) * 16 + dt; l = (n * NT + 2) * 16 + dt - cfg.margin
                    ops.append((l, e, self.ds_v(n, dt, a), n))
        ops.sort(key=lambda x: (x[0], x[1]))
        self.pre_ds = []
        over = 0
        cursor = 0
        for l, e, ins, n in ops:
            pos = None
            for g in range(e, l + 1):
                if load[g % L] + 4 <= 8: pos = g; break
            if pos is None:
                pos = min(range(e, l + 1), key=lambda g: (load[g % L], 0 if mem[g % L] else 1, -g)); over += 1
            mem[pos % L].append(ins); load[pos % L] += 4
            if n == 2 and pos < E: self.pre_ds.append(ins)
        self.over = over
        sc[L - 3].append(I(f's_sub_u32 s{sCNT}, s{sCNT}, 1'))
        sc[L - 2].append(I(f's_cmp_lg_u32 s{sCNT}, 0'))
        gaps = []
        for g in range(L):
            gaps.append([mf[g], sc[g], mem[g], va[g]])
            if g in extra: gaps.append([extra[g], [], [], []])
        self.insert_waits(gaps)
        body = []
        for m, s, me, v in gaps:
            if m is mf[E]: body.append(I(f'L_entry_{self.tag}:'))
            body += [m] + s + me + v
        if cfg.nodma: body = [x for x in body if x.kind != 'dma']
        if cfg.nobar: body = [x for x in body if x.text != 's_barrier']
        if cfg.nods: body = [x for x in body if x.kind != 'ds']
        for d in cfg.drop: body = [x if not x.text.startswith(d) else I('s_nop 0') for x in body]
        return body

    def insert_waits(self, gaps):
        n = len(gaps)
        outst = []
        for rnd in range(2):
            for gi in range(n):
                m, s, me, v = gaps[gi]
                nxt = gaps[(gi + 1) % n][0]
                rd = set(nxt.rd)
                if any(x.text == 's_barrier' for x in gaps[(gi + 1) % n][1]):
                    rd |= {f'a{r}' for r in range(aK, aK + 64)}
                k = max([i for i, (_, w) in enumerate(outst) if w & rd], default=-1)
                assert self.cfg.xorder or not any(x.wr & rd for x in me), 'load right before use'
                have = [x for x in s if x.text.startswith('s_waitcnt lgkmcnt')]
                t = rnd * n + gi
                if k >= 0:
                    req = len(outst) - 1 - k
                    recent = sum(1 for (g0, _) in outst if t - g0 <= 10)
                    N = min(req, recent, 15)
                    if have:
                        old = int(have[0].text.split('(')[1].rstrip(')'))
                        N = min(N, old); s.remove(have[0])
                    s.insert(0, I(f's_waitcnt lgkmcnt({N})'))
                    outst = outst[len(outst) - N:] if N else []
                elif have:
                    N = int(have[0].text.split('(')[1].rstrip(')'))
                    if len(outst) > N: outst = outst[len(outst) - N:] if N else []
                for x in me:
                    if x.kind == 'ds': outst.append((t, x.wr))

    def drain(self):
        NT = self.NT; NU = 8 * NT; U = NU - 1
        o = [I('s_waitcnt lgkmcnt(0)')]
        pv2 = [self.mf_pv(U - 1, 4 + s) for s in range(4)]
        for i, r in enumerate(range(4, 8)):
            o.append(self.op_exp(r)); o.append(pv2[i])
            if (U % NT) not in self.sm: o.append(self.op_add(U, r))
            if r % 2: o.append(self.op_cvt(U, r))
        for dt in range(8): o.append(self.mf_pv(U, dt))
        if (U % NT) in self.sm: o.append(self.mf_sum(U))
        return o

    def stamp(self, k):
        if not self.cfg.diag: return []
        return [I(f's_memtime s[{sST + 2*k}:{sST + 2*k + 1}]')]

    def xmax(self, x, t, op='v_max_f32'):
        o = []
        for sw in ('v_permlane16_swap_b32', 'v_permlane32_swap_b32'):
            o += [I(f'v_mov_b32 v{t}, v{x}'), I(f'{sw} v{x}, v{t}'), I(f'{op} v{x}, v{x}, v{t}')]
        return o

    def late_setup(self):
        o = []; A = lambda t: o.append(I(t))
        for s in range(4):
            A(f'v_add_u32 v4, {4*s}, v2'); A('v_xor_b32 v4, v4, v3'); A('v_lshlrev_b32 v4, 4, v4'); A(f'v_lshl_add_u32 v{vAK+s}, v3, 8, v4')
        A(f'v_lshrrev_b32 v{vS}, 2, v1')
        A(f'v_and_b32 v{vS+1}, 7, v{vS}'); A(f'v_lshlrev_b32 v{vS+1}, 1, v{vS+1}')
        A(f'v_bfe_u32 v{vS+2}, v1, 1, 1')
        A(f'v_and_b32 v{vS+3}, 1, v1'); A(f'v_lshlrev_b32 v{vS+3}, 3, v{vS+3}')
        A(f'v_lshl_add_u32 v{vS+3}, v{vS}, 8, v{vS+3}'); A(f'v_add_u32 v{vS+3}, {LDS_V}, v{vS+3}')
        for dt in range(8):
            A(f'v_add_u32 v4, {2*dt}, v{vS+2}'); A(f'v_xor_b32 v4, v4, v{vS+1}'); A(f'v_lshl_add_u32 v{vAV+dt}, v4, 4, v{vS+3}')
        A('v_and_b32 v4, 1, v1'); A(f'v_mov_b32 v{vS}, 0xaaaaaaaa'); A(f'v_mul_lo_u32 v4, v4, v{vS}'); A(f'v_add_u32 v{vIDX}, 0x44444444, v4')
        A('v_mov_b32 v4, 0x3f803f80')
        for r in range(4): A(f'v_accvgpr_write_b32 a{aONE + r}, v4')
        return o

    def emit(self):
        cfg = self.cfg; NT = self.NT; tg = self.tag
        body = self.build_loop()
        pro = []; A = lambda t: pro.append(I(t))
        A(f'L_start_{tg}:')
        pro += self.stamp(7)
        for i in range(4):
            A(f'v_add_u32 v4, {4*i}, v2'); A('v_xor_b32 v4, v4, v3'); A('v_lshlrev_b32 v4, 4, v4')
            A(f'v_lshl_add_u32 v{self.vDK + i}, v2, 8, v4')
        for i in range(2):
            A(f'v_add_u32 v4, {4*i}, v2'); A('v_lshlrev_b32 v4, 1, v4'); A('v_xor_b32 v4, v4, v3'); A('v_lshlrev_b32 v4, 4, v4')
            A(f'v_lshl_add_u32 v{self.vDV + i}, v2, 8, v4')
        def r_kv(isv, t):
            so = sOFFV if isv else sOFF
            return [I(f's_add_u32 s{so}, s{sWOFF}, {t * 16384}'), I(f's_add_u32 m0, s{sWOFF}, {(LDS_V if isv else 0) + t * 16384}')] + \
                   [self.dma(isv, i) for i in range(4)]
        def r_q(j):
            o = [I(f's_add_u32 s{sT0}, s{sQOFF}, {j*4096}'), I(f's_add_u32 m0, s{sQL}, {(j % 4)*4096}')]
            return o + [I(f'buffer_load_dwordx4 v{self.vDK + i}, s[{SQ}:{SQ+3}], s{sT0} offen offset:{1024*i}{cfg.qnt} lds') for i in range(4)]
        order = ['K0', 'Q0', 'V0'] + [f'Q{j}' for j in range(1, NT - 1)] + ['K1', f'Q{NT-1}', 'V1', 'K2', 'V2']
        rounds = [r_q(int(x[1])) if x[0] == 'Q' else r_kv(x[0] == 'V', int(x[1])) for x in order]
        issued = [0]
        def issue(upto):
            while issued[0] < min(upto, len(rounds)):
                pro.extend(rounds[issued[0]]); issued[0] += 1
        def wait_round(name):
            A(f's_waitcnt vmcnt({4 * (issued[0] - 1 - order.index(name))})')
        def after(name): issue(order.index(name) + 1 + cfg.ahead)
        issue(cfg.ahead)
        pro += self.stamp(8)
        pro += self.late_setup()
        for j in range(NT): A(f'v_mov_b32 v{vL + j}, 0')
        for j in self.sm:
            for r in range(4): A(f'v_accvgpr_write_b32 a{aL + 4*j + r}, 0')
        A(f's_mov_b32 s{sCNT}, 8')
        X = Oreg(4, 2) if self.loader else 74
        assert self.loader or vP + 8 + 8 * len(self.sm) <= X
        QA = X; S0 = X + 4; PH0 = X + 12
        for s_ in range(4): A(f'v_add_u32 v{QA + s_}, s{sQL}, v{vAK + s_}')
        pro += self.stamp(9)
        wait_round('K0')
        pro += self.stamp(10)
        A('s_barrier')
        for n in range(2):
            for a in range(2):
                for s_ in range(4): pro.append(self.ds_k(n, a, s_))
        after('K0')
        pro += self.stamp(11)
        QT = Oreg(NT - 1, 0); TT = QT + 16
        def mix(mfs, vas, lead=0):
            o = []; k = 0; n = len(vas) - lead
            for i, v in enumerate(vas):
                while i >= lead and k < len(mfs) and k * n <= (i - lead) * len(mfs): o.append(mfs[k]); k += 1
                o.append(v)
            return o + mfs[k:]
        def Pfirst(j, h):
            if h == 0 and j not in self.pded: return PH0
            return self.Preg(h * NT + j)
        def pv_first(j):
            o = []
            for h in range(2):
                for dt in range(8):
                    if h == 1 and (j == NT - 1 or (j == NT - 2 and dt >= 4)): continue
                    d = R('v', Oreg(j, dt), 4)
                    o.append(I(f'v_mfma_f32_16x16x32_bf16 {d}, {R("a", Vreg(h, dt), 4)}, {R("v", Pfirst(j, h), 4)}, {d if h else "0"}'))
            if j in self.sm and j != NT - 1: o.append(self.mf_sum(NT + j))
            return o
        for j in range(NT):
            if j == NT - 1: wait_round('K1'); after('K1')
            wait_round(f'Q{j}')
            pro += self.stamp(12 + j)
            for s_ in range(4):
                A(f'ds_read_b128 {R("v", QT + 4*s_, 4)}, v{QA + s_} offset:{(j % 4)*4096}')
            after(f'Q{j}')
            for g8 in (0, 8):
                A(f's_waitcnt lgkmcnt({2 - g8 // 4})')
                rr = range(g8, g8 + 8); t = lambda r: TT + 2 * (r % 8)
                for r in rr: A(f'v_lshlrev_b32 v{t(r)}, 16, v{QT + r}'); A(f'v_and_b32 v{t(r)+1}, 0xffff0000, v{QT + r}')
                for r in rr: A(f'v_pk_mul_f32 v[{t(r)}:{t(r)+1}], v[{t(r)}:{t(r)+1}], s[{sC}:{sC+1}]')
                for r in rr: A(f'v_cvt_pk_bf16_f32 v{t(r)}, v{t(r)}, v{t(r)+1}')
                for r in rr: A(f'v_accvgpr_write_b32 a{Qreg(j, 0) + r}, v{t(r)}')
            nm = vNM + 4 * j
            Sreg = lambda h, a: (vS if h else S0) + 4 * a
            def chain(h, a, c0):
                d = R('v', Sreg(h, a), 4)
                return [I(f'v_mfma_f32_16x16x32_bf16 {d}, {R("a", Kreg(h, a, s_), 4)}, {R("a", Qreg(j, s_), 4)}, {c0 if s_ == 0 else d}') for s_ in range(4)]
            pro += chain(0, 0, '0')
            A(f's_cmp_lg_u32 s{sMODE}, 0'); A('s_nop 5'); A(f's_cbranch_scc1 L_km{j}_{tg}')
            A(f'v_max3_f32 v{nm}, v{S0}, v{S0+1}, v{S0+2}'); A(f'v_max_f32 v{nm}, v{nm}, v{S0+3}')
            pro += self.xmax(nm, nm + 1)
            for r in (1, 2, 3, 0): A(f'v_sub_f32 v{nm + r}, 0, v{nm}')
            A(f'L_km{j}_{tg}:')
            c0 = R('v', nm, 4)
            va = [I(f'v_add_f32 v{S0 + r}, v{S0 + r}, v{nm}') for r in range(4)]
            def sm4(h, a):
                b = Sreg(h, a); p = Pfirst(j, h) + 2 * a
                o = [I(f'v_exp_f32 v{b + r}, v{b + r}') for r in range(4)]
                if j not in self.sm: o += [I(f'v_add_f32 v{vL + j}, v{vL + j}, v{b + r}') for r in range(4)]
                o += [I(f'v_cvt_pk_bf16_f32 v{p}, v{b}, v{b+1}'), I(f'v_cvt_pk_bf16_f32 v{p+1}, v{b+2}, v{b+3}')]
                return o
            pro += mix(chain(0, 1, c0) + chain(1, 0, c0), va + sm4(0, 0))
            pro += mix(chain(1, 1, c0), sm4(0, 1))
            rest = sm4(1, 0) + (sm4(1, 1) if j != NT - 1 else [])
            pv = pv_first(j)
            if j == 0:
                pro += rest
                wait_round('V0'); A('s_barrier')
                for n in range(2):
                    for dt in range(8):
                        for a in range(2): pro.append(self.ds_v(n, dt, a))
                after('V0')
                A('s_waitcnt lgkmcnt(0)')
                pro += pv
            else:
                pro += mix(pv[:8], rest, lead=2) + pv[8:]
        issue(99)
        pro += self.stamp(17)
        wait_round('V2' if cfg.fill == 1 else 'V1')
        pro += self.stamp(18)
        A('s_barrier')
        pro += self.stamp(19)
        pro += self.pre_ds
        if self.loader:
            A(f's_mov_b32 s{sOFF}, {3*16384}'); A(f's_mov_b32 s{sOFFV}, {3*16384}')
            for m0, dmas, post in [self.group(k) for k in range(24, 8 + cfg.la)]: pro += [m0] + dmas + [post]
            pro += self.pre_dma
        if cfg.fill >= 2:
            A(f's_waitcnt vmcnt({(0, 0, 0, 16, 32)[cfg.fill] if self.loader else 0})'); A('s_barrier')
        A('s_waitcnt lgkmcnt(0)')
        pro += self.stamp(1)
        A(f's_branch L_entry_{tg}')
        pro, _ = check(pro, fix=True)
        ei = [i for i, x in enumerate(body) if x.text.startswith('L_entry')][0]
        _, prob = check(pro[-12:] + body[ei:] + body)
        assert cfg.xorder or not prob, prob[:5]
        tail = self.stamp(2) + self.drain()
        tail += self.epilogue()
        full, _ = check(body[-24:] + tail, fix=True, start=24)
        tail = full[24:]
        out = pro + [I('.p2align 6'), I(f'L_loop_{tg}:')] + body + [I(f's_cbranch_scc1 L_loop_{tg}')] + tail
        return out

    def epilogue(self):
        cfg = self.cfg; NT = self.NT; tg = self.tag
        o = []; A = lambda t: o.append(I(t))
        A(f's_mov_b64 s[{sT0}:{sT0+1}], 0')
        A(f's_mov_b32 s{sCNT}, {(127 + cfg.thr_exp) << 23}')
        T = vP
        W = vAV; RD = vAV + 4
        A(f's_lshl_b32 s{sOFF}, s{sWAVE}, 13'); A(f's_add_u32 s{sOFF}, s{sOFF}, {LDS_X}')
        A(f'v_mov_b32 v7, s{sOFF}')
        A('v_and_b32 v4, 1, v2'); A('v_lshlrev_b32 v4, 1, v4'); A(f'v_lshrrev_b32 v{T}, 1, v2'); A(f'v_add_u32 v4, v4, v{T}')
        A(f'v_lshl_add_u32 v{T}, v3, 8, v7'); A(f'v_lshl_add_u32 v{T+1}, v2, 8, v7')
        for e in range(4):
            A(f'v_add_u32 v{T+2}, {4*e}, v4'); A(f'v_xor_b32 v{T+2}, v{T+2}, v3'); A(f'v_lshl_add_u32 v{W+e}, v{T+2}, 4, v{T}')
            A(f'v_add_u32 v{T+2}, {4*e}, v2'); A(f'v_xor_b32 v{T+2}, v{T+2}, v3'); A(f'v_lshl_add_u32 v{RD+e}, v{T+2}, 4, v{T+1}')
        A('v_lshlrev_b32 v6, 4, v1')
        def flush(j):
            A(f's_add_u32 s{sOFF}, s{sQOFF}, {j*4096}')
            for e in range(4):
                A(f's_waitcnt lgkmcnt({3 - e})')
                A(f'buffer_store_dwordx4 {R("v", T + 12 + 4*e, 4)}, v6, s[{SO}:{SO+3}], s{sOFF} offen offset:{1024*e}{cfg.ont}')
        for j in range(NT):
            l = vL + j
            if j in self.sm:
                A(f'v_accvgpr_read_b32 v{l}, a{aL + 4*j}'); A(f'v_accvgpr_read_b32 v{T}, a{aL + 4*j + 1}')
                A(f'v_add_f32 v{l}, v{l}, v{T}')
            else:
                o.extend(self.xmax(l, T, 'v_add_f32'))
            A(f'v_cmp_nlt_f32 vcc, v{l}, s{sCNT}')
            A(f'v_rcp_f32 v{T+2}, v{l}')
            A(f's_or_b64 s[{sT0}:{sT0+1}], s[{sT0}:{sT0+1}], vcc')
            b0 = Oreg(j, 0)
            for r in range(0, 32, 2):
                A(f'v_pk_mul_f32 v[{b0+r}:{b0+r+1}], v[{b0+r}:{b0+r+1}], v[{T+2}:{T+3}] op_sel_hi:[1,0]')
            if j: flush(j - 1)
            for r in range(16):
                A(f'v_cvt_pk_bf16_f32 v{b0+r}, v{b0+2*r}, v{b0+2*r+1}')
            for e in range(4):
                d = b0 + 4 * e
                A(f'v_permlane16_swap_b32 v{d}, v{d+2}'); A(f'v_permlane16_swap_b32 v{d+1}, v{d+3}')
            for e in range(4):
                A(f'ds_write_b128 v{W+e}, {R("v", b0 + 4*e, 4)} offset:{(j % 2) * 4096}')
            for e in range(4):
                A(f'ds_read_b128 {R("v", T + 12 + 4*e, 4)}, v{RD+e} offset:{(j % 2) * 4096 + 1024*e}')
        flush(NT - 1)
        o += self.stamp(3)
        if cfg.drop or cfg.nodma or cfg.nods or cfg.swap_pv or cfg.xorder: A('s_branch L_fin')
        A(f's_cmp_lg_u32 s{sMODE}, 0'); A('s_cbranch_scc1 L_fin')
        A(f's_cmp_lg_u64 s[{sT0}:{sT0+1}], 0'); A(f's_cselect_b32 s{sT0}, 1, 0')
        A(f'v_mov_b32 v4, s{sT0}'); A(f'ds_write_b32 v7, v4')
        A('s_waitcnt lgkmcnt(0)'); A('s_barrier')
        A(f'v_and_b32 v4, 3, v1'); A(f'v_lshlrev_b32 v4, 13, v4'); A(f'v_add_u32 v4, {LDS_X}, v4')
        A('ds_read_b32 v4, v4'); A('s_waitcnt lgkmcnt(0)')
        A('v_cmp_ne_u32 vcc, 0, v4'); A('s_nop 3')
        A('s_cmp_eq_u64 vcc, 0'); A('s_cbranch_scc1 L_fin')
        A('s_waitcnt vmcnt(0)')
        A(f's_mov_b32 s{sMODE}, 1'); A(f's_mov_b32 s{sOFF}, 0')
        for j in range(NT): A(f'v_mov_b32 v{vL + j}, 0xff800000')
        A(f'L_slow_{tg}:')
        for s in range(4):
            A(f'buffer_load_dwordx4 {R("a", Kreg(0, 0, s), 4)}, v5, s[{SK}:{SK+3}], s{sOFF} offen offset:{64*s}')
        A('s_waitcnt vmcnt(0)')
        for j in range(NT):
            nm = vNM + 4 * j
            for s in range(4):
                A(f'v_mfma_f32_16x16x32_bf16 {R("v", nm, 4)}, {R("a", Kreg(0, 0, s), 4)}, {R("a", Qreg(j, s), 4)}, {"0" if s == 0 else R("v", nm, 4)}')
        A('s_nop 7')
        for j in range(NT):
            nm = vNM + 4 * j
            A(f'v_max3_f32 v{vL+j}, v{vL+j}, v{nm}, v{nm+1}'); A(f'v_max3_f32 v{vL+j}, v{vL+j}, v{nm+2}, v{nm+3}')
        A(f's_add_u32 s{sOFF}, s{sOFF}, 4096'); A(f's_cmp_lt_u32 s{sOFF}, 524288'); A('s_nop 3'); A(f's_cbranch_scc1 L_slow_{tg}')
        for j in range(NT):
            nm = vNM + 4 * j
            o.extend(self.xmax(vL + j, nm))
            for r in range(4): A(f'v_sub_f32 v{nm + r}, 0, v{vL + j}')
        A('s_barrier')
        A(f's_branch L_start_{tg}')
        return o

def generate(cfg):
    H = []; A = lambda t: H.append(I(t))
    A('s_cmp_ge_u32 s2, 256'); A('s_cbranch_scc1 L_end')
    A('s_load_dwordx4 s[4:7], s[0:1], 0'); A('s_load_dwordx4 s[8:11], s[0:1], 16')
    if cfg.diag:
        A(f's_load_dwordx2 s[{sWS}:{sWS+1}], s[0:1], 40'); A(f's_memtime s[{sST}:{sST+1}]'); A(f's_memrealtime s[{sST+8}:{sST+9}]')
    A('v_lshrrev_b32 v4, 6, v0'); A('v_and_b32 v1, 63, v0'); A(f'v_readfirstlane_b32 s{sWAVE}, v4')
    if cfg.pref:
        A('s_getpc_b64 s[44:45]')
        A('L_pc:')
        if cfg.pref == 1:
            A('s_lshr_b32 s46, s2, 3'); A('s_and_b32 s46, s46, 7'); A('s_lshl_b32 s46, s46, 13')
            A('v_lshlrev_b32 v8, 7, v1'); A('v_add_u32 v8, s46, v8')
        else:
            A('s_lshr_b32 s46, s2, 3'); A('s_and_b32 s46, s46, 1'); A('s_lshl_b32 s46, s46, 15')
            A('v_lshlrev_b32 v8, 7, v0'); A('v_add_u32 v8, s46, v8')
        A('v_min_u32 v8, L_code_end-L_pc-4, v8')
        A('v_mov_b32 v9, s45'); A('v_add_co_u32 v8, vcc, s44, v8'); A('s_nop 1'); A('v_addc_co_u32 v9, vcc, 0, v9, vcc')
        A('global_load_dword v0, v[8:9], off')
    A('v_lshrrev_b32 v2, 4, v1'); A('v_and_b32 v3, 15, v1')
    A('v_lshlrev_b32 v5, 8, v3'); A('v_lshl_add_u32 v5, v2, 4, v5')
    A(f's_mov_b32 s{sC}, {fbits(CSC)}'); A(f's_mov_b32 s{sC+1}, {fbits(CSC)}')
    A(f's_mov_b32 s{sMODE}, 0')
    if cfg.diag: A('s_mov_b32 s100, 0')
    if cfg.xperm: A('s_mov_b32 s101, 0x07060302')
    A(f's_mul_i32 s{sQOFF}, s{sWAVE}, {80*256}')
    A(f's_lshl_b32 s{sWOFF}, s{sWAVE}, 12')
    A(f's_lshl_b32 s{sQL}, s{sWAVE}, 14'); A(f's_add_u32 s{sQL}, s{sQL}, {LDS_V + 2*16384}')
    A(f's_cmp_eq_u32 s{sWAVE}, 0'); A(f's_cselect_b32 s{sQL}, {3*16384}, s{sQL}')
    A(f's_mul_i32 s{sT0}, s2, 77824'); A(f's_lshl_b32 s{sT1}, s2, 19')
    A('s_waitcnt lgkmcnt(0)')
    for srd, ptr, off, n in ((SQ, 4, sT0, 77824), (SK, 6, sT1, 524288), (SV, 8, sT1, 524288), (SO, 10, sT0, 77824)):
        A(f's_add_u32 s{srd}, s{ptr}, s{off}'); A(f's_addc_u32 s{srd+1}, s{ptr+1}, 0')
        A(f's_mov_b32 s{srd+2}, {n}'); A(f's_mov_b32 s{srd+3}, 0x20000')
    if cfg.diag:
        A(f's_mov_b32 s{sWS+2}, 0x100000'); A(f's_mov_b32 s{sWS+3}, 0x20000')
    A(f's_cmp_eq_u32 s{sWAVE}, 3'); A('s_cbranch_scc1 L_start_w4')
    H, _ = check(H, fix=True)
    w5 = Wave(cfg, 5, False); w4 = Wave(cfg, 4, True)
    c5 = w5.emit(); c4 = w4.emit()
    F = []; A = lambda t: F.append(I(t))
    A('L_fin:')
    if cfg.diag:
        A('s_waitcnt vmcnt(0)')
        A(f's_memtime s[{sST+10}:{sST+11}]'); A(f's_memrealtime s[{sST+12}:{sST+13}]'); A('s_waitcnt lgkmcnt(0)')
        for i in range(48): A(f'v_mov_b32 v{16+i}, s{sST+i}')
        A(f's_lshl_b32 s{sT0}, s2, 2'); A(f's_add_u32 s{sT0}, s{sT0}, s{sWAVE}'); A(f's_lshl_b32 s{sT0}, s{sT0}, 8')
        if cfg.trace:
            A(f's_cmp_lg_u32 s{sWAVE}, 3'); A('s_cbranch_scc1 L_notr')
            A(f's_lshl_b32 s{sT1}, s2, 9'); A(f's_add_u32 s{sT1}, s{sT1}, 0x80000'); A('v_lshlrev_b32 v4, 2, v1')
            A(f'buffer_store_dword v250, v4, s[{sWS}:{sWS+3}], s{sT1} offen'); A(f'buffer_store_dword v251, v4, s[{sWS}:{sWS+3}], s{sT1} offen offset:256')
            A('L_notr:')
        A(f'v_mov_b32 v4, s{sT0}'); A('s_mov_b64 exec, 1')
        for i in range(12): A(f'buffer_store_dwordx4 v[{16+4*i}:{19+4*i}], v4, s[{sWS}:{sWS+3}], 0 offen offset:{16*i}')
    A('L_end:'); A('s_endpgm'); A('L_code_end:')
    hdr = open('cdna_kernels/' + NAME + '.s.ref').read().split('\n') if False else []
    lines = ['; attention forward, one (batch, head) per workgroup; generated by a hand-written scheduler script',
             f'; @launch grid=(256,1,1) block=(256,1,1) lds={LDS_TOTAL}',
             '.amdgcn_target "amdgcn-amd-amdhsa--gfx950"', '.text', f'.globl {NAME}_kernel', '.p2align 8',
             f'.type {NAME}_kernel,@function', f'{NAME}_kernel:']
    for x in H + c5 + c4 + F:
        lines.append(x.text if x.kind == 'label' else '    ' + x.text)
    lines += ['.section .rodata,"a"', '.p2align 6', f'.amdhsa_kernel {NAME}_kernel',
              '  .amdhsa_next_free_vgpr 512', '  .amdhsa_next_free_sgpr 102', '  .amdhsa_accum_offset 256',
              '  .amdhsa_group_segment_fixed_size 0', '  .amdhsa_kernarg_size 48', '  .amdhsa_user_sgpr_count 2',
              '  .amdhsa_user_sgpr_kernarg_segment_ptr 1', '  .amdhsa_system_sgpr_workgroup_id_x 1',
              '  .amdhsa_float_denorm_mode_32 3', '.end_amdhsa_kernel']
    sys.stderr.write(f'over5={w5.over} over4={w4.over} n5={len(c5)} n4={len(c4)}\n')
    return '\n'.join(lines) + '\n'

def mk(**kw):
    c = Cfg()
    for k, v in kw.items():
        assert hasattr(c, k), k
        setattr(c, k, v)
    return c

if __name__ == '__main__':
    out = sys.argv[1]
    kw = eval('dict(' + (sys.argv[2] if len(sys.argv) > 2 else '') + ')')
    open(out, 'w').write(generate(mk(**kw)))
```

```python
import sys, struct
from asmlib import I, R, check, regs

NAME = 'standalone__mha_softmax__near_ridge'
LOG2E = 1.4426950408889634
CSC = LOG2E * (128 ** -0.5)
def fbits(x): return struct.unpack('<I', struct.pack('<f', x))[0]

class Cfg:
    sm5 = ()
    sm4 = (0, 1, 2, 3)
    diag = False
    margin = 12
    qnt = ' nt'
    ont = ''
    thr_exp = 32
    dma_space = 4
    dma_start = 2
    margin_b = 8
    ahead = 3
    trace = False
    win = 59
    left = 16
    xorder = ''
    xperm = False
    la = 20
    fill = 0
    warm = ()
    pref = 0
    drop = ()
    swap_pv = False
    nodma = False
    nobar = False
    nods = False

SQ, SK, SV, SO = 12, 16, 20, 24
sWAVE, sCNT, sOFF, sMODE, sC, sT0, sT1, sQOFF = 28, 29, 30, 31, 32, 34, 35, 36
sWOFF, sQL, sOFFV = 37, 38, 39
sWS = 40
sST = 48
LDS_V = 65536
LDS_X = 131072
LDS_TOTAL = 163840

vS = 8
vNM = 16
vL = 36
vIDX = 41
vAK = 42
vAV = 46
vP = 54
vO = 96
aQ = 0; aK = 80; aV = 144; aL = 208; aONE = 228

def Oreg(j, dt): return vO + (j * 8 + dt) * 4
def Qreg(j, s): return aQ + (j * 4 + s) * 4
def Kreg(buf, a, s): return aK + buf * 32 + (a * 4 + s) * 4
def Vreg(buf, dt): return aV + buf * 32 + dt * 4

class Wave:
    def __init__(self, cfg, NT, loader):
        self.cfg = cfg; self.NT = NT; self.loader = loader
        self.sm = tuple(cfg.sm4 if NT == 4 else cfg.sm5)
        self.pded = {j: vP + 8 + 8 * i for i, j in enumerate(self.sm)}
        assert vP + 8 + 8 * len(self.sm) <= 94 or len(self.sm) == NT
        if len(self.sm) == NT: self.pded = {j: vP + 8 * i for i, j in enumerate(self.sm)}
        self.vDV = 94
        self.vDK = Oreg(4, 0) if loader else 90
        self.tag = f'w{NT}'

    def Preg(self, u):
        NT = self.NT; j = u % NT; h = (u // NT) % 2
        if j in self.pded: return self.pded[j] + 4 * h
        return vP + 4 * (u % 2)

    def mf_qk(self, u, a, s):
        NT = self.NT; j = u % NT; hh = (u // NT)
        d = R('v', vS + 4 * a, 4)
        c = R('v', vNM + 4 * j, 4) if s == 0 else d
        return I(f'v_mfma_f32_16x16x32_bf16 {d}, {R("a", Kreg(hh % 2, a, s), 4)}, {R("a", Qreg(j, s), 4)}, {c}')
    def mf_pv(self, u, dt):
        NT = self.NT; j = u % NT; hh = (u // NT)
        o = R('v', Oreg(j, dt), 4)
        if self.cfg.swap_pv:
            return I(f'v_mfma_f32_16x16x32_bf16 {o}, {R("v", self.Preg(u), 4)}, {R("a", Vreg(hh % 2, dt), 4)}, {o}')
        return I(f'v_mfma_f32_16x16x32_bf16 {o}, {R("a", Vreg(hh % 2, dt), 4)}, {R("v", self.Preg(u), 4)}, {o}')
    def mf_sum(self, u):
        j = u % self.NT
        return I(f'v_smfmac_f32_16x16x64_bf16 {R("a", aL + 4 * j, 4)}, {R("a", aONE, 4)}, {R("v", self.pded[j], 8)}, v{vIDX}')
    def op_exp(self, r): return I(f'v_exp_f32 v{vS + r}, v{vS + r}')
    def op_add(self, u, r):
        j = u % self.NT
        return I(f'v_add_f32 v{vL + j}, v{vL + j}, v{vS + r}')
    def op_cvt(self, u, r):
        if self.cfg.xperm: return I(f'v_perm_b32 v{self.Preg(u) + r // 2}, v{vS + r}, v{vS + r - 1}, s101')
        return I(f'v_cvt_pk_bf16_f32 v{self.Preg(u) + r // 2}, v{vS + r - 1}, v{vS + r}')
    def ds_k(self, n, a, s):
        off = ((n // 2) % 4) * 16384 + (n % 2) * 8192 + a * 4096
        return I(f'ds_read_b128 {R("a", Kreg(n % 2, a, s), 4)}, v{vAK + s} offset:{off}')
    def ds_v(self, n, dt, a):
        off = ((n // 2) % 4) * 16384 + (n % 2) * 8192 + a * 4096
        return I(f'ds_read_b64_tr_b16 {R("a", Vreg(n % 2, dt) + 2 * a, 2)}, v{vAV + dt} offset:{off}')
    def dma(self, isv, i):
        srd = SV if isv else SK
        vo = self.vDV + (i & 1) if isv else self.vDK + i
        return I(f'buffer_load_dwordx4 v{vo}, s[{srd}:{srd+3}], s{sOFFV if isv else sOFF} offen offset:{i*1024} nt lds')

    def groups(self, isv, slot):
        so = sOFFV if isv else sOFF
        return [(I(f's_mov_b32 m0, {(LDS_V if isv else 0) + slot * 16384 + g * 4096}'), [self.dma(isv, i) for i in range(4)],
                 I(f's_add_u32 s{so}, s{so}, 4096')) for g in range(4)]

    def group(self, k):
        return self.groups((k % 8) // 4, (k // 8) % 4)[k % 4]

    def build_loop(self):
        cfg = self.cfg; NT = self.NT
        NU = 8 * NT; L = NU * 16; E = 2 * NT * 16
        mf = [None] * L; extra = {}
        sc = [[] for _ in range(L)]; mem = [[] for _ in range(L)]; va = [[] for _ in range(L)]
        load = [0] * L
        for u in range(NU):
            b = 16 * u
            for s in range(4):
                mf[b + s] = self.mf_qk(u, 0, s); mf[b + 8 + s] = self.mf_qk(u, 1, s)
                mf[b + 4 + s] = self.mf_pv((u - 2) % NU, 4 + s); mf[b + 12 + s] = self.mf_pv((u - 1) % NU, s)
            if cfg.xorder:
                q0 = [self.mf_qk(u, 0, s) for s in range(4)]; q1 = [self.mf_qk(u, 1, s) for s in range(4)]
                pv = [self.mf_pv((u - 2) % NU, d) for d in range(8)]
                if cfg.xorder == 'B': seq = q0 + q1 + pv
                if cfg.xorder == 'C': seq = [m for pr in zip(q0, q1) for m in pr] + pv
                if cfg.xorder == 'D': seq = [m for pr in zip(q0 + q1, pv) for m in pr]
                if cfg.xorder == 'E': seq = q0 + pv[:4] + q1 + pv[4:]
                mf[b:b + 16] = seq
            x = (u - 1) % NU
            if (x % NT) in self.sm and (x // NT) % 2 == 1: extra[b + 15] = self.mf_sum(x)
            for r in range(8):
                g = (b + 8 + 2 * r) % L
                va[g].append(self.op_exp(r)); load[g] += 8
                g1 = (g + 1) % L
                if (u % NT) not in self.sm: va[g1].append(self.op_add(u, r)); load[g1] += 4
                if r % 2: va[g1].append(self.op_cvt(u, r)); load[g1] += 4
        bar = {}
        for n in range(1, 8, 2):
            g = n * NT * 16
            sc[g - 1].append(I(f's_waitcnt vmcnt({4 * (cfg.la - 8) if self.loader else 0})'))
            sc[g].append(I('s_barrier')); bar[n] = g
        self.bar_gaps = set(bar.values())
        if cfg.diag and cfg.trace and self.loader:
            for n in range(1, 8, 2):
                g = bar[n]
                sc[g] += [I('s_memtime s[96:97]'), I('s_memrealtime s[98:99]'), I('s_waitcnt lgkmcnt(0)'),
                          I('s_mov_b32 m0, s100'), I('s_nop 0'), I('v_writelane_b32 v250, s96, m0'), I('v_writelane_b32 v251, s98, m0'), I('s_add_u32 s100, s100, 1')]
        self.pre_dma = []
        for n in (range(1, 8, 2) if self.loader else []):
            p = (n + 1) // 2
            g = bar[n] + cfg.dma_start
            def put(lst, pos, ins):
                lst[pos % L].append(ins)
                if n == 1 and pos < E: self.pre_dma.append((kk, ins))
            def free_sc(pos): return not sc[pos % L] and pos % L not in (L - 3, L - 2, L - 1)
            k = 0
            for kk in range(8 * p + cfg.la, 8 * p + cfg.la + 8):
                m0, dmas, post = self.group(kk)
                while not free_sc(g): g += 1
                put(sc, g, I(f's_waitcnt vmcnt({cfg.win})')); g += 1
                while not free_sc(g): g += 1
                put(sc, g, m0); g += 1
                for d in dmas:
                    g = max(g, bar[n] + cfg.dma_start + 2 + int(k * cfg.dma_space)); k += 1
                    while load[g % L] + 4 > 8 or mem[g % L]: g += 1
                    put(mem, g, d); load[g % L] += 4
                    g += 1
                while not free_sc(g): g += 1
                put(sc, g, post); g += 1
            assert g - bar[n] < 2 * NT * 16 - 1, (g - bar[n])
        ops = []
        for n in range(1, 9):
            for a in range(2):
                for s in range(4):
                    e = (n - 1) * NT * 16 + (1 if (n - 1) % 2 == 1 else 0)
                    l = n * NT * 16 + 8 * a + s - cfg.margin
                    if n % 2: l = min(l, n * NT * 16 - 1 - cfg.margin_b)
                    ops.append((l, e, self.ds_k(n, a, s), n))
            for dt in range(8):
                for a in range(2):
                    if dt < 4:
                        e = (n - 1) * NT * 16 + 12 + dt; l = (n * NT + 1) * 16 + 12 + dt - cfg.margin
                    else:
                        e = ((n - 1) * NT + 1) * 16 + dt; l = (n * NT + 2) * 16 + dt - cfg.margin
                    ops.append((l, e, self.ds_v(n, dt, a), n))
        ops.sort(key=lambda x: (x[0], x[1]))
        self.pre_ds = []
        over = 0
        cursor = 0
        for l, e, ins, n in ops:
            pos = None
            for g in range(e, l + 1):
                if load[g % L] + 4 <= 8: pos = g; break
            if pos is None:
                pos = min(range(e, l + 1), key=lambda g: (load[g % L], 0 if mem[g % L] else 1, -g)); over += 1
            mem[pos % L].append(ins); load[pos % L] += 4
            if n == 2 and pos < E: self.pre_ds.append(ins)
        self.over = over
        sc[L - 3].append(I(f's_sub_u32 s{sCNT}, s{sCNT}, 1'))
        sc[L - 2].append(I(f's_cmp_lg_u32 s{sCNT}, 0'))
        gaps = []
        for g in range(L):
            gaps.append([mf[g], sc[g], mem[g], va[g]])
            if g in extra: gaps.append([extra[g], [], [], []])
        self.insert_waits(gaps)
        body = []
        for m, s, me, v in gaps:
            if m is mf[E]: body.append(I(f'L_entry_{self.tag}:'))
            body += [m] + s + me + v
        if cfg.nodma: body = [x for x in body if x.kind != 'dma']
        if cfg.nobar: body = [x for x in body if x.text != 's_barrier']
        if cfg.nods: body = [x for x in body if x.kind != 'ds']
        for d in cfg.drop: body = [x if not x.text.startswith(d) else I('s_nop 0') for x in body]
        return body

    def insert_waits(self, gaps):
        n = len(gaps)
        outst = []
        for rnd in range(2):
            for gi in range(n):
                m, s, me, v = gaps[gi]
                nxt = gaps[(gi + 1) % n][0]
                rd = set(nxt.rd)
                if any(x.text == 's_barrier' for x in gaps[(gi + 1) % n][1]):
                    rd |= {f'a{r}' for r in range(aK, aK + 64)}
                k = max([i for i, (_, w) in enumerate(outst) if w & rd], default=-1)
                assert self.cfg.xorder or not any(x.wr & rd for x in me), 'load right before use'
                have = [x for x in s if x.text.startswith('s_waitcnt lgkmcnt')]
                t = rnd * n + gi
                if k >= 0:
                    req = len(outst) - 1 - k
                    recent = sum(1 for (g0, _) in outst if t - g0 <= 10)
                    N = min(req, recent, 15)
                    if have:
                        old = int(have[0].text.split('(')[1].rstrip(')'))
                        N = min(N, old); s.remove(have[0])
                    s.insert(0, I(f's_waitcnt lgkmcnt({N})'))
                    outst = outst[len(outst) - N:] if N else []
                elif have:
                    N = int(have[0].text.split('(')[1].rstrip(')'))
                    if len(outst) > N: outst = outst[len(outst) - N:] if N else []
                for x in me:
                    if x.kind == 'ds': outst.append((t, x.wr))

    def drain(self):
        NT = self.NT; NU = 8 * NT; U = NU - 1
        o = [I('s_waitcnt lgkmcnt(0)')]
        pv2 = [self.mf_pv(U - 1, 4 + s) for s in range(4)]
        for i, r in enumerate(range(4, 8)):
            o.append(self.op_exp(r)); o.append(pv2[i])
            if (U % NT) not in self.sm: o.append(self.op_add(U, r))
            if r % 2: o.append(self.op_cvt(U, r))
        for dt in range(8): o.append(self.mf_pv(U, dt))
        if (U % NT) in self.sm: o.append(self.mf_sum(U))
        return o

    def stamp(self, k):
        if not self.cfg.diag: return []
        return [I(f's_memtime s[{sST + 2*k}:{sST + 2*k + 1}]')]

    def xmax(self, x, t, op='v_max_f32'):
        o = []
        for sw in ('v_permlane16_swap_b32', 'v_permlane32_swap_b32'):
            o += [I(f'v_mov_b32 v{t}, v{x}'), I(f'{sw} v{x}, v{t}'), I(f'{op} v{x}, v{x}, v{t}')]
        return o

    def late_setup(self):
        o = []; A = lambda t: o.append(I(t))
        for s in range(4):
            A(f'v_add_u32 v4, {4*s}, v2'); A('v_xor_b32 v4, v4, v3'); A('v_lshlrev_b32 v4, 4, v4'); A(f'v_lshl_add_u32 v{vAK+s}, v3, 8, v4')
        A(f'v_lshrrev_b32 v{vS}, 2, v1')
        A(f'v_and_b32 v{vS+1}, 7, v{vS}'); A(f'v_lshlrev_b32 v{vS+1}, 1, v{vS+1}')
        A(f'v_bfe_u32 v{vS+2}, v1, 1, 1')
        A(f'v_and_b32 v{vS+3}, 1, v1'); A(f'v_lshlrev_b32 v{vS+3}, 3, v{vS+3}')
        A(f'v_lshl_add_u32 v{vS+3}, v{vS}, 8, v{vS+3}'); A(f'v_add_u32 v{vS+3}, {LDS_V}, v{vS+3}')
        for dt in range(8):
            A(f'v_add_u32 v4, {2*dt}, v{vS+2}'); A(f'v_xor_b32 v4, v4, v{vS+1}'); A(f'v_lshl_add_u32 v{vAV+dt}, v4, 4, v{vS+3}')
        A('v_and_b32 v4, 1, v1'); A(f'v_mov_b32 v{vS}, 0xaaaaaaaa'); A(f'v_mul_lo_u32 v4, v4, v{vS}'); A(f'v_add_u32 v{vIDX}, 0x44444444, v4')
        A('v_mov_b32 v4, 0x3f803f80')
        for r in range(4): A(f'v_accvgpr_write_b32 a{aONE + r}, v4')
        return o

    def emit(self):
        cfg = self.cfg; NT = self.NT; tg = self.tag
        body = self.build_loop()
        pro = []; A = lambda t: pro.append(I(t))
        A(f'L_start_{tg}:')
        pro += self.stamp(7)
        for i in range(4):
            A(f'v_add_u32 v4, {4*i}, v2'); A('v_xor_b32 v4, v4, v3'); A('v_lshlrev_b32 v4, 4, v4')
            A(f'v_lshl_add_u32 v{self.vDK + i}, v2, 8, v4')
        for i in range(2):
            A(f'v_add_u32 v4, {4*i}, v2'); A('v_lshlrev_b32 v4, 1, v4'); A('v_xor_b32 v4, v4, v3'); A('v_lshlrev_b32 v4, 4, v4')
            A(f'v_lshl_add_u32 v{self.vDV + i}, v2, 8, v4')
        def r_kv(isv, t):
            so = sOFFV if isv else sOFF
            return [I(f's_add_u32 s{so}, s{sWOFF}, {t * 16384}'), I(f's_add_u32 m0, s{sWOFF}, {(LDS_V if isv else 0) + t * 16384}')] + \
                   [self.dma(isv, i) for i in range(4)]
        def r_q(j):
            o = [I(f's_add_u32 s{sT0}, s{sQOFF}, {j*4096}'), I(f's_add_u32 m0, s{sQL}, {(j % 4)*4096}')]
            return o + [I(f'buffer_load_dwordx4 v{self.vDK + i}, s[{SQ}:{SQ+3}], s{sT0} offen offset:{1024*i}{cfg.qnt} lds') for i in range(4)]
        order = ['K0', 'Q0', 'V0'] + [f'Q{j}' for j in range(1, NT - 1)] + ['K1', f'Q{NT-1}', 'V1', 'K2']
        rounds = [r_q(int(x[1])) if x[0] == 'Q' else r_kv(x[0] == 'V', int(x[1])) for x in order]
        issued = [0]
        def issue(upto):
            while issued[0] < min(upto, len(rounds)):
                pro.extend(rounds[issued[0]]); issued[0] += 1
        def wait_round(name):
            A(f's_waitcnt vmcnt({4 * (issued[0] - 1 - order.index(name))})')
        def after(name): issue(order.index(name) + 1 + cfg.ahead)
        issue(cfg.ahead)
        pro += self.stamp(8)
        pro += self.late_setup()
        for j in range(NT): A(f'v_mov_b32 v{vL + j}, 0')
        for j in self.sm:
            for r in range(4): A(f'v_accvgpr_write_b32 a{aL + 4*j + r}, 0')
        A(f's_mov_b32 s{sCNT}, 8')
        X = Oreg(4, 2) if self.loader else 74
        assert self.loader or vP + 8 + 8 * len(self.sm) <= X
        QA = X; S0 = X + 4; PH0 = X + 12
        for s_ in range(4): A(f'v_add_u32 v{QA + s_}, s{sQL}, v{vAK + s_}')
        pro += self.stamp(9)
        wait_round('K0')
        pro += self.stamp(10)
        A('s_barrier')
        for n in range(2):
            for a in range(2):
                for s_ in range(4): pro.append(self.ds_k(n, a, s_))
        after('K0')
        pro += self.stamp(11)
        QT = Oreg(NT - 1, 0); TT = QT + 16
        def mix(mfs, vas, lead=0):
            o = []; k = 0; n = len(vas) - lead
            for i, v in enumerate(vas):
                while i >= lead and k < len(mfs) and k * n <= (i - lead) * len(mfs): o.append(mfs[k]); k += 1
                o.append(v)
            return o + mfs[k:]
        def Pfirst(j, h):
            if h == 0 and j not in self.pded: return PH0
            return self.Preg(h * NT + j)
        def pv_first(j):
            o = []
            for h in range(2):
                for dt in range(8):
                    if h == 1 and (j == NT - 1 or (j == NT - 2 and dt >= 4)): continue
                    d = R('v', Oreg(j, dt), 4)
                    o.append(I(f'v_mfma_f32_16x16x32_bf16 {d}, {R("a", Vreg(h, dt), 4)}, {R("v", Pfirst(j, h), 4)}, {d if h else "0"}'))
            if j in self.sm and j != NT - 1: o.append(self.mf_sum(NT + j))
            return o
        for j in range(NT):
            if j == NT - 1: wait_round('K1'); after('K1')
            wait_round(f'Q{j}')
            pro += self.stamp(12 + j)
            for s_ in range(4):
                A(f'ds_read_b128 {R("v", QT + 4*s_, 4)}, v{QA + s_} offset:{(j % 4)*4096}')
            after(f'Q{j}')
            for g8 in (0, 8):
                A(f's_waitcnt lgkmcnt({2 - g8 // 4})')
                rr = range(g8, g8 + 8); t = lambda r: TT + 2 * (r % 8)
                for r in rr: A(f'v_lshlrev_b32 v{t(r)}, 16, v{QT + r}'); A(f'v_and_b32 v{t(r)+1}, 0xffff0000, v{QT + r}')
                for r in rr: A(f'v_pk_mul_f32 v[{t(r)}:{t(r)+1}], v[{t(r)}:{t(r)+1}], s[{sC}:{sC+1}]')
                for r in rr: A(f'v_cvt_pk_bf16_f32 v{t(r)}, v{t(r)}, v{t(r)+1}')
                for r in rr: A(f'v_accvgpr_write_b32 a{Qreg(j, 0) + r}, v{t(r)}')
            nm = vNM + 4 * j
            Sreg = lambda h, a: (vS if h else S0) + 4 * a
            def chain(h, a, c0):
                d = R('v', Sreg(h, a), 4)
                return [I(f'v_mfma_f32_16x16x32_bf16 {d}, {R("a", Kreg(h, a, s_), 4)}, {R("a", Qreg(j, s_), 4)}, {c0 if s_ == 0 else d}') for s_ in range(4)]
            pro += chain(0, 0, '0')
            A(f's_cmp_lg_u32 s{sMODE}, 0'); A('s_nop 5'); A(f's_cbranch_scc1 L_km{j}_{tg}')
            A(f'v_max3_f32 v{nm}, v{S0}, v{S0+1}, v{S0+2}'); A(f'v_max_f32 v{nm}, v{nm}, v{S0+3}')
            pro += self.xmax(nm, nm + 1)
            for r in (1, 2, 3, 0): A(f'v_sub_f32 v{nm + r}, 0, v{nm}')
            A(f'L_km{j}_{tg}:')
            c0 = R('v', nm, 4)
            va = [I(f'v_add_f32 v{S0 + r}, v{S0 + r}, v{nm}') for r in range(4)]
            def sm4(h, a):
                b = Sreg(h, a); p = Pfirst(j, h) + 2 * a
                o = [I(f'v_exp_f32 v{b + r}, v{b + r}') for r in range(4)]
                if j not in self.sm: o += [I(f'v_add_f32 v{vL + j}, v{vL + j}, v{b + r}') for r in range(4)]
                o += [I(f'v_cvt_pk_bf16_f32 v{p}, v{b}, v{b+1}'), I(f'v_cvt_pk_bf16_f32 v{p+1}, v{b+2}, v{b+3}')]
                return o
            pro += mix(chain(0, 1, c0) + chain(1, 0, c0), va + sm4(0, 0))
            pro += mix(chain(1, 1, c0), sm4(0, 1))
            rest = sm4(1, 0) + (sm4(1, 1) if j != NT - 1 else [])
            pv = pv_first(j)
            if j == 0:
                pro += rest
                wait_round('V0'); A('s_barrier')
                for n in range(2):
                    for dt in range(8):
                        for a in range(2): pro.append(self.ds_v(n, dt, a))
                after('V0')
                A('s_waitcnt lgkmcnt(0)')
                pro += pv
            else:
                pro += mix(pv[:8], rest, lead=2) + pv[8:]
        issue(99)
        rest = []
        if self.loader:
            A(f's_mov_b32 s{sOFF}, {3*16384}'); A(f's_mov_b32 s{sOFFV}, {2*16384}')
            for k in range(20, 8 + cfg.la):
                m0, dmas, post = self.group(k)
                rest += [(k, x) for x in [m0] + dmas + [post]]
            rest += [(k, x) for k, x in self.pre_dma if not x.text.startswith('s_waitcnt')]
        early = [x for k, x in rest if k < 24]
        pro += early
        pro += self.stamp(17)
        A(f's_waitcnt vmcnt({4 + sum(x.kind == "dma" for x in early)})')
        pro += self.stamp(18)
        A('s_barrier')
        pro += self.stamp(19)
        pro += self.pre_ds
        pro += [x for k, x in rest if k >= 24]
        if cfg.left is not None:
            A(f's_waitcnt vmcnt({cfg.left if self.loader else 0})'); A('s_barrier')
        A('s_waitcnt lgkmcnt(0)')
        pro += self.stamp(1)
        A(f's_branch L_entry_{tg}')
        pro, _ = check(pro, fix=True)
        ei = [i for i, x in enumerate(body) if x.text.startswith('L_entry')][0]
        _, prob = check(pro[-12:] + body[ei:] + body)
        assert cfg.xorder or not prob, prob[:5]
        tail = self.stamp(2) + self.drain()
        tail += self.epilogue()
        full, _ = check(body[-24:] + tail, fix=True, start=24)
        tail = full[24:]
        out = pro + [I('.p2align 6'), I(f'L_loop_{tg}:')] + body + [I(f's_cbranch_scc1 L_loop_{tg}')] + tail
        return out

    def epilogue(self):
        cfg = self.cfg; NT = self.NT; tg = self.tag
        o = []; A = lambda t: o.append(I(t))
        A(f's_mov_b64 s[{sT0}:{sT0+1}], 0')
        A(f's_mov_b32 s{sCNT}, {(127 + cfg.thr_exp) << 23}')
        T = vP
        W = vAV; RD = vAV + 4
        A(f's_lshl_b32 s{sOFF}, s{sWAVE}, 13'); A(f's_add_u32 s{sOFF}, s{sOFF}, {LDS_X}')
        A(f'v_mov_b32 v7, s{sOFF}')
        A('v_and_b32 v4, 1, v2'); A('v_lshlrev_b32 v4, 1, v4'); A(f'v_lshrrev_b32 v{T}, 1, v2'); A(f'v_add_u32 v4, v4, v{T}')
        A(f'v_lshl_add_u32 v{T}, v3, 8, v7'); A(f'v_lshl_add_u32 v{T+1}, v2, 8, v7')
        for e in range(4):
            A(f'v_add_u32 v{T+2}, {4*e}, v4'); A(f'v_xor_b32 v{T+2}, v{T+2}, v3'); A(f'v_lshl_add_u32 v{W+e}, v{T+2}, 4, v{T}')
            A(f'v_add_u32 v{T+2}, {4*e}, v2'); A(f'v_xor_b32 v{T+2}, v{T+2}, v3'); A(f'v_lshl_add_u32 v{RD+e}, v{T+2}, 4, v{T+1}')
        A('v_lshlrev_b32 v6, 4, v1')
        def flush(j):
            A(f's_add_u32 s{sOFF}, s{sQOFF}, {j*4096}')
            for e in range(4):
                A(f's_waitcnt lgkmcnt({3 - e})')
                A(f'buffer_store_dwordx4 {R("v", T + 12 + 4*e, 4)}, v6, s[{SO}:{SO+3}], s{sOFF} offen offset:{1024*e}{cfg.ont}')
        for j in range(NT):
            l = vL + j
            if j in self.sm:
                A(f'v_accvgpr_read_b32 v{l}, a{aL + 4*j}'); A(f'v_accvgpr_read_b32 v{T}, a{aL + 4*j + 1}')
                A(f'v_add_f32 v{l}, v{l}, v{T}')
            else:
                o.extend(self.xmax(l, T, 'v_add_f32'))
            A(f'v_cmp_nlt_f32 vcc, v{l}, s{sCNT}')
            A(f'v_rcp_f32 v{T+2}, v{l}')
            A(f's_or_b64 s[{sT0}:{sT0+1}], s[{sT0}:{sT0+1}], vcc')
            b0 = Oreg(j, 0)
            for r in range(0, 32, 2):
                A(f'v_pk_mul_f32 v[{b0+r}:{b0+r+1}], v[{b0+r}:{b0+r+1}], v[{T+2}:{T+3}] op_sel_hi:[1,0]')
            if j: flush(j - 1)
            for r in range(16):
                A(f'v_cvt_pk_bf16_f32 v{b0+r}, v{b0+2*r}, v{b0+2*r+1}')
            for e in range(4):
                d = b0 + 4 * e
                A(f'v_permlane16_swap_b32 v{d}, v{d+2}'); A(f'v_permlane16_swap_b32 v{d+1}, v{d+3}')
            for e in range(4):
                A(f'ds_write_b128 v{W+e}, {R("v", b0 + 4*e, 4)} offset:{(j % 2) * 4096}')
            for e in range(4):
                A(f'ds_read_b128 {R("v", T + 12 + 4*e, 4)}, v{RD+e} offset:{(j % 2) * 4096 + 1024*e}')
        flush(NT - 1)
        o += self.stamp(3)
        if cfg.drop or cfg.nodma or cfg.nods or cfg.swap_pv or cfg.xorder: A('s_branch L_fin')
        A(f's_cmp_lg_u32 s{sMODE}, 0'); A('s_cbranch_scc1 L_fin')
        A(f's_cmp_lg_u64 s[{sT0}:{sT0+1}], 0'); A(f's_cselect_b32 s{sT0}, 1, 0')
        A(f'v_mov_b32 v4, s{sT0}'); A(f'ds_write_b32 v7, v4')
        A('s_waitcnt lgkmcnt(0)'); A('s_barrier')
        A(f'v_and_b32 v4, 3, v1'); A(f'v_lshlrev_b32 v4, 13, v4'); A(f'v_add_u32 v4, {LDS_X}, v4')
        A('ds_read_b32 v4, v4'); A('s_waitcnt lgkmcnt(0)')
        A('v_cmp_ne_u32 vcc, 0, v4'); A('s_nop 3')
        A('s_cmp_eq_u64 vcc, 0'); A('s_cbranch_scc1 L_fin')
        A('s_waitcnt vmcnt(0)')
        A(f's_mov_b32 s{sMODE}, 1'); A(f's_mov_b32 s{sOFF}, 0')
        for j in range(NT): A(f'v_mov_b32 v{vL + j}, 0xff800000')
        A(f'L_slow_{tg}:')
        for s in range(4):
            A(f'buffer_load_dwordx4 {R("a", Kreg(0, 0, s), 4)}, v5, s[{SK}:{SK+3}], s{sOFF} offen offset:{64*s}')
        A('s_waitcnt vmcnt(0)')
        for j in range(NT):
            nm = vNM + 4 * j
            for s in range(4):
                A(f'v_mfma_f32_16x16x32_bf16 {R("v", nm, 4)}, {R("a", Kreg(0, 0, s), 4)}, {R("a", Qreg(j, s), 4)}, {"0" if s == 0 else R("v", nm, 4)}')
        A('s_nop 7')
        for j in range(NT):
            nm = vNM + 4 * j
            A(f'v_max3_f32 v{vL+j}, v{vL+j}, v{nm}, v{nm+1}'); A(f'v_max3_f32 v{vL+j}, v{vL+j}, v{nm+2}, v{nm+3}')
        A(f's_add_u32 s{sOFF}, s{sOFF}, 4096'); A(f's_cmp_lt_u32 s{sOFF}, 524288'); A('s_nop 3'); A(f's_cbranch_scc1 L_slow_{tg}')
        for j in range(NT):
            nm = vNM + 4 * j
            o.extend(self.xmax(vL + j, nm))
            for r in range(4): A(f'v_sub_f32 v{nm + r}, 0, v{vL + j}')
        A('s_barrier')
        A(f's_branch L_start_{tg}')
        return o

def generate(cfg):
    H = []; A = lambda t: H.append(I(t))
    A('s_cmp_ge_u32 s2, 256'); A('s_cbranch_scc1 L_end')
    A('s_load_dwordx4 s[4:7], s[0:1], 0'); A('s_load_dwordx4 s[8:11], s[0:1], 16')
    if cfg.diag:
        A(f's_load_dwordx2 s[{sWS}:{sWS+1}], s[0:1], 40'); A(f's_memtime s[{sST}:{sST+1}]'); A(f's_memrealtime s[{sST+8}:{sST+9}]')
    A('v_lshrrev_b32 v4, 6, v0'); A('v_and_b32 v1, 63, v0'); A(f'v_readfirstlane_b32 s{sWAVE}, v4')
    if cfg.pref:
        A('s_getpc_b64 s[44:45]')
        A('L_pc:')
        if cfg.pref == 1:
            A('s_lshr_b32 s46, s2, 3'); A('s_and_b32 s46, s46, 7'); A('s_lshl_b32 s46, s46, 13')
            A('v_lshlrev_b32 v8, 7, v1'); A('v_add_u32 v8, s46, v8')
        else:
            A('s_lshr_b32 s46, s2, 3'); A('s_and_b32 s46, s46, 1'); A('s_lshl_b32 s46, s46, 15')
            A('v_lshlrev_b32 v8, 7, v0'); A('v_add_u32 v8, s46, v8')
        A('v_min_u32 v8, L_code_end-L_pc-4, v8')
        A('v_mov_b32 v9, s45'); A('v_add_co_u32 v8, vcc, s44, v8'); A('s_nop 1'); A('v_addc_co_u32 v9, vcc, 0, v9, vcc')
        A('global_load_dword v0, v[8:9], off')
    A('v_lshrrev_b32 v2, 4, v1'); A('v_and_b32 v3, 15, v1')
    A('v_lshlrev_b32 v5, 8, v3'); A('v_lshl_add_u32 v5, v2, 4, v5')
    A(f's_mov_b32 s{sC}, {fbits(CSC)}'); A(f's_mov_b32 s{sC+1}, {fbits(CSC)}')
    A(f's_mov_b32 s{sMODE}, 0')
    if cfg.diag: A('s_mov_b32 s100, 0')
    if cfg.xperm: A('s_mov_b32 s101, 0x07060302')
    A(f's_mul_i32 s{sQOFF}, s{sWAVE}, {80*256}')
    A(f's_lshl_b32 s{sWOFF}, s{sWAVE}, 12')
    A(f's_lshl_b32 s{sQL}, s{sWAVE}, 14'); A(f's_add_u32 s{sQL}, s{sQL}, {LDS_V + 2*16384}')
    A(f's_cmp_eq_u32 s{sWAVE}, 0'); A(f's_cselect_b32 s{sQL}, {3*16384}, s{sQL}')
    A(f's_mul_i32 s{sT0}, s2, 77824'); A(f's_lshl_b32 s{sT1}, s2, 19')
    A('s_waitcnt lgkmcnt(0)')
    for srd, ptr, off, n in ((SQ, 4, sT0, 77824), (SK, 6, sT1, 524288), (SV, 8, sT1, 524288), (SO, 10, sT0, 77824)):
        A(f's_add_u32 s{srd}, s{ptr}, s{off}'); A(f's_addc_u32 s{srd+1}, s{ptr+1}, 0')
        A(f's_mov_b32 s{srd+2}, {n}'); A(f's_mov_b32 s{srd+3}, 0x20000')
    if cfg.diag:
        A(f's_mov_b32 s{sWS+2}, 0x100000'); A(f's_mov_b32 s{sWS+3}, 0x20000')
    A(f's_cmp_eq_u32 s{sWAVE}, 3'); A('s_cbranch_scc1 L_start_w4')
    H, _ = check(H, fix=True)
    w5 = Wave(cfg, 5, False); w4 = Wave(cfg, 4, True)
    c5 = w5.emit(); c4 = w4.emit()
    F = []; A = lambda t: F.append(I(t))
    A('L_fin:')
    if cfg.diag:
        A('s_waitcnt vmcnt(0)')
        A(f's_memtime s[{sST+10}:{sST+11}]'); A(f's_memrealtime s[{sST+12}:{sST+13}]'); A('s_waitcnt lgkmcnt(0)')
        for i in range(48): A(f'v_mov_b32 v{16+i}, s{sST+i}')
        A(f's_lshl_b32 s{sT0}, s2, 2'); A(f's_add_u32 s{sT0}, s{sT0}, s{sWAVE}'); A(f's_lshl_b32 s{sT0}, s{sT0}, 8')
        if cfg.trace:
            A(f's_cmp_lg_u32 s{sWAVE}, 3'); A('s_cbranch_scc1 L_notr')
            A(f's_lshl_b32 s{sT1}, s2, 9'); A(f's_add_u32 s{sT1}, s{sT1}, 0x80000'); A('v_lshlrev_b32 v4, 2, v1')
            A(f'buffer_store_dword v250, v4, s[{sWS}:{sWS+3}], s{sT1} offen'); A(f'buffer_store_dword v251, v4, s[{sWS}:{sWS+3}], s{sT1} offen offset:256')
            A('L_notr:')
        A(f'v_mov_b32 v4, s{sT0}'); A('s_mov_b64 exec, 1')
        for i in range(12): A(f'buffer_store_dwordx4 v[{16+4*i}:{19+4*i}], v4, s[{sWS}:{sWS+3}], 0 offen offset:{16*i}')
    A('L_end:'); A('s_endpgm'); A('L_code_end:')
    hdr = open('cdna_kernels/' + NAME + '.s.ref').read().split('\n') if False else []
    lines = ['; attention forward, one (batch, head) per workgroup; generated by a hand-written scheduler script',
             f'; @launch grid=(256,1,1) block=(256,1,1) lds={LDS_TOTAL}',
             '.amdgcn_target "amdgcn-amd-amdhsa--gfx950"', '.text', f'.globl {NAME}_kernel', '.p2align 8',
             f'.type {NAME}_kernel,@function', f'{NAME}_kernel:']
    for x in H + c5 + c4 + F:
        lines.append(x.text if x.kind == 'label' else '    ' + x.text)
    lines += ['.section .rodata,"a"', '.p2align 6', f'.amdhsa_kernel {NAME}_kernel',
              '  .amdhsa_next_free_vgpr 512', '  .amdhsa_next_free_sgpr 102', '  .amdhsa_accum_offset 256',
              '  .amdhsa_group_segment_fixed_size 0', '  .amdhsa_kernarg_size 48', '  .amdhsa_user_sgpr_count 2',
              '  .amdhsa_user_sgpr_kernarg_segment_ptr 1', '  .amdhsa_system_sgpr_workgroup_id_x 1',
              '  .amdhsa_float_denorm_mode_32 3', '.end_amdhsa_kernel']
    sys.stderr.write(f'over5={w5.over} over4={w4.over} n5={len(c5)} n4={len(c4)}\n')
    return '\n'.join(lines) + '\n'

def mk(**kw):
    c = Cfg()
    for k, v in kw.items():
        assert hasattr(c, k), k
        setattr(c, k, v)
    return c

if __name__ == '__main__':
    out = sys.argv[1]
    kw = eval('dict(' + (sys.argv[2] if len(sys.argv) > 2 else '') + ')')
    open(out, 'w').write(generate(mk(**kw)))
```

```python
import sys
NAME = 'standalone__mha_softmax__near_ridge'
def head(A, waves, nv):
    A(f'; @launch grid=(256,1,1) block=({64*waves},1,1) lds=163840')
    A('.amdgcn_target "amdgcn-amd-amdhsa--gfx950"')
    A('.text'); A(f'.globl {NAME}_kernel'); A('.p2align 8'); A(f'.type {NAME}_kernel,@function')
    A(f'{NAME}_kernel:')
    A('s_cmp_ge_u32 s2, 256'); A('s_cbranch_scc1 L_done')
    A('s_load_dwordx4 s[4:7], s[0:1], 0')
    A('s_load_dwordx2 s[8:9], s[0:1], 16')
    A('s_load_dwordx2 s[10:11], s[0:1], 40')
    A('s_waitcnt lgkmcnt(0)')
    A('s_mov_b32 s12, s6'); A('s_mov_b32 s13, s7'); A('s_mov_b32 s14, 0x8000000'); A('s_mov_b32 s15, 0x20000')
    A('s_mov_b32 s16, s10'); A('s_mov_b32 s17, s11'); A('s_mov_b32 s18, 0x100000'); A('s_mov_b32 s19, 0x20000')
    A('s_mov_b32 s32, s8'); A('s_mov_b32 s33, s9'); A('s_mov_b32 s34, 0x8000000'); A('s_mov_b32 s35, 0x20000')
    A('s_lshl_b32 s20, s2, 19')
    A('v_lshlrev_b32 v1, 4, v0')
    A('v_lshrrev_b32 v3, 6, v0'); A('s_nop 0'); A('v_readfirstlane_b32 s22, v3')
def tail(A, waves, nv, acc_off):
    A('s_memtime s[44:45]'); A('s_memrealtime s[46:47]'); A('s_waitcnt lgkmcnt(0) vmcnt(0)')
    for i in range(8): A(f'v_mov_b32 v{16+i}, s{40+i}')
    A('s_cmp_ge_u32 s22, 4'); A('s_cbranch_scc1 L_done')
    A('s_lshl_b32 s25, s2, 2'); A('s_add_u32 s25, s25, s22'); A('s_lshl_b32 s25, s25, 5')
    A('v_mov_b32 v4, s25')
    A('s_mov_b64 exec, 1')
    A('buffer_store_dwordx4 v[16:19], v4, s[16:19], 0 offen')
    A('buffer_store_dwordx4 v[20:23], v4, s[16:19], 0 offen offset:16')
    A('s_waitcnt vmcnt(0)')
    A('L_done:'); A('s_endpgm')
    A('.section .rodata,"a"'); A('.p2align 6'); A(f'.amdhsa_kernel {NAME}_kernel')
    A(f'  .amdhsa_next_free_vgpr {nv}'); A('  .amdhsa_next_free_sgpr 102'); A(f'  .amdhsa_accum_offset {acc_off}')
    A('  .amdhsa_group_segment_fixed_size 0'); A('  .amdhsa_kernarg_size 48'); A('  .amdhsa_user_sgpr_count 2')
    A('  .amdhsa_user_sgpr_kernarg_segment_ptr 1'); A('  .amdhsa_system_sgpr_workgroup_id_x 1'); A('.end_amdhsa_kernel')

def gen(shape='16', order='both', data='kk', iters=32):
    L = []; A = L.append
    head(A, 4, 512)
    for i in range(32):
        A(f's_add_u32 s21, s20, {i*4096}')
        srd = 's[12:15]'
        if data[0] == 'v' and i < 16: srd = 's[32:35]'
        A(f'buffer_load_dwordx4 v[{64+4*i}:{64+4*i+3}], v1, {srd}, s21 offen')
    A('s_waitcnt vmcnt(0)')
    if data[1] == 'p':
        for i in range(64):
            r = 128 + i
            A(f'v_lshlrev_b32 v4, 16, v{r}'); A(f'v_and_b32 v5, 0xffff0000, v{r}')
            A('v_add_f32 v4, -2.0, v4'); A('v_add_f32 v5, -2.0, v5')
            A('v_exp_f32 v4, v4'); A('v_exp_f32 v5, v5'); A('s_nop 1')
            A(f'v_cvt_pk_bf16_f32 v{r}, v4, v5')
    if data[0] == '1':
        for i in range(64): A(f'v_mov_b32 v{64+i}, 0x3f803f80')
    for i in range(256): A(f'v_accvgpr_write_b32 a{i}, 0')
    A('s_mov_b32 s30, 0')
    A('s_barrier')
    A('s_memtime s[40:41]'); A('s_memrealtime s[42:43]'); A('s_waitcnt lgkmcnt(0)')
    A('.p2align 6')
    A('L_loop:')
    nm = 80 if shape == '32' else 160
    for g in range(nm):
        if order == 'both': a, b, c = g % 16, (g * 3) % 16, g % 40
        elif order == 'afix': a, b, c = (g // 5) % 16, (g % 5) + 5 * ((g // 5) % 3), g % 40
        elif order == 'bfix': b, a, c = (g // 5) % 16, (g % 5) + 5 * ((g // 5) % 3), g % 40
        elif order == 'chain': a, b, c = g % 16, (g * 3) % 16, (g // 4) % 40
        elif order == 'same': a, b, c = 0, 0, g % 40
        if shape == '32':
            c = c % 16
            A(f'v_mfma_f32_32x32x16_bf16 a[{16*c}:{16*c+15}], v[{64+4*a}:{64+4*a+3}], v[{128+4*b}:{128+4*b+3}], a[{16*c}:{16*c+15}]')
        else:
            A(f'v_mfma_f32_16x16x32_bf16 a[{4*c}:{4*c+3}], v[{64+4*a}:{64+4*a+3}], v[{128+4*b}:{128+4*b+3}], a[{4*c}:{4*c+3}]')
    A('s_add_u32 s30, s30, 1'); A(f's_cmp_lt_u32 s30, {iters}'); A('s_cbranch_scc1 L_loop')
    tail(A, 4, 512, 256)
    return '\n'.join(L) + '\n'

if __name__ == '__main__':
    names = []
    for shape in ('16', '32'):
        for order in ('both', 'afix', 'bfix', 'chain', 'same'):
            n = f'mb2_{shape}_{order}_kk.s'; names.append(n)
            open(n, 'w').write(gen(shape, order, 'kk'))
        for data in ('vp', '1p'):
            for order in ('both', 'afix', 'bfix'):
                n = f'mb2_{shape}_{order}_{data}.s'; names.append(n)
                open(n, 'w').write(gen(shape, order, data))
    print(' '.join(names))
    import json; print(json.dumps(['work/' + n for n in names]))
```

```python
import sys
from gen_mb2 import head, tail, NAME
def gen(qk='chain', pv='bfix', iters=36, only=''):
    L = []; A = L.append
    head(A, 4, 512)
    for i in range(48):
        A(f's_add_u32 s21, s20, {i*4096}')
        srd = 's[32:35]' if 8 <= i < 24 else 's[12:15]'
        A(f'buffer_load_dwordx4 a[{4*i}:{4*i+3}], v1, {srd}, s21 offen')
    A('s_waitcnt vmcnt(0)')
    for i in range(32):
        A(f'v_accvgpr_read_b32 v6, a{160+i}')
        A(f'v_lshlrev_b32 v4, 16, v6'); A(f'v_and_b32 v5, 0xffff0000, v6')
        A('v_add_f32 v4, -2.0, v4'); A('v_add_f32 v5, -2.0, v5')
        A('v_exp_f32 v4, v4'); A('v_exp_f32 v5, v5'); A('s_nop 1')
        A(f'v_cvt_pk_bf16_f32 v{64+i}, v4, v5')
    for i in range(64):
        A(f'v_accvgpr_read_b32 v6, a{96+i}')
        A(f'v_lshlrev_b32 v4, 16, v6'); A(f'v_and_b32 v5, 0xffff0000, v6')
        A('v_mul_f32 v4, 0x3e0293ee, v4'); A('v_mul_f32 v5, 0x3e0293ee, v5')
        A(f'v_cvt_pk_bf16_f32 v6, v4, v5'); A(f'v_accvgpr_write_b32 a{96+i}, v6')
    for i in range(128): A(f'v_mov_b32 v{128+i}, 0')
    for i in range(8): A(f'v_accvgpr_read_b32 v{48+i}, a{i}'); A(f'v_lshlrev_b32 v{48+i}, 16, v{48+i}')
    for i in range(4): A(f'v_mov_b32 v{44+i}, 0xc1500000')
    A('s_mov_b32 s30, 0')
    A('s_barrier')
    A('s_memtime s[40:41]'); A('s_memrealtime s[42:43]'); A('s_waitcnt lgkmcnt(0)')
    A('.p2align 6')
    A('L_loop:')
    K = lambda a, s: f'a[{16*a+4*s}:{16*a+4*s+3}]'
    V = lambda h, dt: f'a[{32+32*h+4*dt}:{32+32*h+4*dt+3}]'
    Q = lambda j, s: f'a[{96+16*j+4*s}:{96+16*j+4*s+3}]'
    P = lambda j, h: f'v[{64+8*j+4*h}:{64+8*j+4*h+3}]'
    S = lambda j, a: f'v[{96+8*j+4*a}:{96+8*j+4*a+3}]'
    O = lambda j, dt: f'v[{128+32*j+4*dt}:{128+32*j+4*dt+3}]'
    M = lambda d, a, b, c: f'v_mfma_f32_16x16x32_bf16 {d}, {a}, {b}, {c}'
    qkl = []; pvl = []
    for h in range(2):
        if qk == 'chain': idx = [(j, a, s) for j in range(4) for a in range(2) for s in range(4)]
        if qk == 'bfix2': idx = [(j, a, s) for j in range(4) for s in range(4) for a in range(2)]
        if qk == 'afix4': idx = [(j, a, s) for a in range(2) for s in range(4) for j in range(4)]
        if qk == 'snake': idx = [(j, a, (3 - s if a else s)) for j in range(4) for a in range(2) for s in range(4)]
        if qk == 'snakeA': idx = [(j, a ^ (j & 1), (3 - s if a else s)) for j in range(4) for a in range(2) for s in range(4)]
        if qk == 'chainsw': idx = [(j, a, s) for j in range(4) for a in range(2) for s in range(4)]
        for j, a, s in idx:
            x, y = (K(a, s), Q(j, s)) if qk != 'chainsw' else (Q(j, s), K(a, s))
            qkl.append(M(S(j, a), x, y, 'v[44:47]' if len(qkl) % 4 == 0 and qk.startswith(('snake', 'chain')) or (s == 0 and not qk.startswith(('snake', 'chain'))) else S(j, a)))
    if pv in ('bfix', 'swap'): idx = [(j, h, dt) for h in range(2) for j in range(4) for dt in range(8)]
    if pv in ('chain2', 'chain2sw'): idx = [(j, h, dt) for j in range(4) for dt in range(8) for h in range(2)]
    if pv in ('afix4', 'afix4sw'): idx = [(j, h, dt) for h in range(2) for dt in range(8) for j in range(4)]
    if pv == 'snakesw': idx = [(j, h ^ (dt & 1), dt) for j in range(4) for dt in range(8) for h in range(2)]
    if pv == 'grp2sw': idx = [(j0 + (k ^ (dt & 1)), h ^ k, dt) for j0 in (0, 2) for dt in range(8) for k in range(2) for h in range(2)]
    if pv == 'grp4sw': idx = [((k if dt % 2 == 0 else 3 - k), h ^ (k & 1), dt) for dt in range(8) for k in range(4) for h in range(2)]
    if pv == 'grp2': idx = [(j0 + (k ^ (dt & 1)), h ^ k, dt) for j0 in (0, 2) for dt in range(8) for k in range(2) for h in range(2)]
    for j, h, dt in idx:
        x, y = (V(h, dt), P(j, h)) if 'sw' not in pv else (P(j, h), V(h, dt))
        pvl.append(M(O(j, dt), x, y, O(j, dt)))
    seq = []
    for u in range(8):
        if only == 'qk': seq += qkl[8*u:8*u+8] * 2
        elif only == 'pv': seq += pvl[8*u:8*u+8] * 2
        else: seq += qkl[8*u:8*u+8] + pvl[8*u:8*u+8]
    if only == 'qk': seq = qkl + qkl
    if only == 'pv': seq = pvl + pvl
    for g, m in enumerate(seq):
        A(m)
        if g % 2 == 0: A(f'v_exp_f32 v{56 + (g//2) % 8}, v{48 + (g//2) % 8}')
        else:
            A(f'v_add_f32 v8, v8, v{56 + (g//2) % 8}')
            if g % 4 == 3: A(f'v_cvt_pk_bf16_f32 v{10 + (g//4) % 4}, v{56 + (g//2) % 8}, v{56 + (g//2 - 1) % 8}')
    A('s_add_u32 s30, s30, 1'); A(f's_cmp_lt_u32 s30, {iters}'); A('s_cbranch_scc1 L_loop')
    tail(A, 4, 512, 256)
    return '\n'.join(L) + '\n'
cfgs = {}
for q in ('chain', 'snake', 'snakeA'): cfgs[f'qk_{q}'] = dict(qk=q, only='qk')
for p in ('chain2sw', 'snakesw', 'grp2sw', 'grp4sw', 'chain2', 'grp2'): cfgs[f'pv_{p}'] = dict(pv=p, only='pv')
if __name__ == '__main__':
    for n, c in cfgs.items():
        open(f'mb10_{n}.s', 'w').write(gen(**c))
    print(' '.join(f'mb10_{n}.s' for n in cfgs))
```
